```python
import torch

def _softmax(x, axis=-1):
    return torch.softmax(x, dim=axis)

def _gelu(x):
    return torch.nn.functional.gelu(x, approximate='tanh')

def _silu(x):
    return torch.nn.functional.silu(x)

def _sigmoid(x):
    return torch.sigmoid(x)

def _layernorm(x, axis=-1, eps=1e-05):
    m = x.mean(dim=axis, keepdim=True)
    v = x.var(dim=axis, keepdim=True, unbiased=False)
    return (x - m) / torch.sqrt(v + eps)

def _scatter_add(tgt, idx, src, axis=0):
    return tgt.clone().index_add_(axis, idx, src)

def _segment_sum(src, seg, n):
    out = torch.zeros((n,) + src.shape[1:], dtype=src.dtype)
    return out.index_add_(0, seg, src)

def _pad(x, pw):
    flat = tuple((v for pair in reversed(pw) for v in pair))
    return torch.nn.functional.pad(x, flat)
kernel_name = 'adaLN_cond__sliding_block_cached__glu_gated_swiglu__decode'

def setup_inputs():

    _w = lambda a: (lambda t: t.to(torch.bfloat16) if t.is_floating_point() else t)(torch.as_tensor(a))

    def _A_setup():
        B, Sq, D = (4, 1, 512)
        Hq, Hkv, Sk, Dh = (32, 8, 4096, 128)
        assert Hq % Hkv == 0, (Hq, Hkv)
        return {'x': _w((lambda *s: torch.randn(*s, dtype=torch.bfloat16) * 0.1)(B, Sq, D)), 'k_cache': _w((lambda *s: torch.randn(*s, dtype=torch.bfloat16) * 0.8)(B, Hkv, Sk, Dh)), 'v_cache': _w((lambda *s: torch.randn(*s, dtype=torch.bfloat16) * 3.2)(B, Hkv, Sk, Dh)), 'wq': _w((lambda *s: torch.randn(*s, dtype=torch.bfloat16) * 0.8)(D, Hq * Dh) * D ** (-0.5)), 'wo': _w((lambda *s: torch.randn(*s, dtype=torch.bfloat16) * 3.2)(Hq * Dh, D) * (Hq * Dh) ** (-0.5))}
    _A_in = _A_setup()

    def _B_setup():
        B, S, D, F = (4, 1, 512, 1792)
        return {'x': _w((lambda *s: torch.randn(*s, dtype=torch.bfloat16) * 0.1)(B, S, D)), 'w1': _w((lambda *s: torch.randn(*s, dtype=torch.bfloat16) * 3.2)(D, F) * (2.0 / D) ** 0.5), 'w3': _w((lambda *s: torch.randn(*s, dtype=torch.bfloat16) * 3.2)(D, F) * (2.0 / D) ** 0.5), 'w2': _w((lambda *s: torch.randn(*s, dtype=torch.bfloat16) * 3.2)(F, D) * (2.0 / F) ** 0.5)}
    _B_in = _B_setup()
    return {'A_x': _A_in['x'], 'A_k_cache': _A_in['k_cache'], 'A_v_cache': _A_in['v_cache'], 'A_wq': _A_in['wq'], 'A_wo': _A_in['wo'], 'B_x': _B_in['x'], 'B_w1': _B_in['w1'], 'B_w3': _B_in['w3'], 'B_w2': _B_in['w2'], 'c': _w((lambda *s: torch.randn(*s, dtype=torch.bfloat16) * 0.8)(4, 512) * 8.0), 'w_mod': _w((lambda *s: torch.randn(*s, dtype=torch.bfloat16) * 0.8)(512, 6 * 512) * 512 ** (-0.5) * 8.0)}

def reference(A_x, A_k_cache, A_v_cache, A_wq, A_wo, B_x, B_w1, B_w3, B_w2, c, w_mod):

    def _A_ref(x, k_cache, v_cache, wq, wo):
        B, Sq, D = x.shape
        Hq, Dh = (32, 128)
        Hkv, Sk = (k_cache.shape[1], k_cache.shape[2])
        W = min(4096, max(256, Sk // 4))
        rep = Hq // Hkv
        q = (lambda x, *d: x.permute(*d))((x @ wq).reshape(B, Sq, Hq, Dh), 0, 2, 1, 3)
        k = (lambda x, n, axis: torch.repeat_interleave(x, n, dim=axis))(k_cache[:, :, Sk - W:, :], rep, axis=1)
        v = (lambda x, n, axis: torch.repeat_interleave(x, n, dim=axis))(v_cache[:, :, Sk - W:, :], rep, axis=1)
        scores = torch.einsum('bhqd,bhkd->bhqk', q, k) * Dh ** (-0.5)
        p = _softmax(scores, axis=-1)
        o = torch.einsum('bhqk,bhkd->bhqd', p, v)
        return (lambda x, *d: x.permute(*d))(o, 0, 2, 1, 3).reshape(B, Sq, Hq * Dh) @ wo

    def _B_ref(x, w1, w3, w2):
        gate = torch.einsum('bsd,df->bsf', x, w1)
        up = torch.einsum('bsd,df->bsf', x, w3)
        h = _silu(gate) * up
        out = torch.einsum('bsf,fd->bsd', h, w2)
        return out
    x = A_x
    mod = (_silu(c) @ w_mod).reshape(c.shape[0], 6, 1, -1)
    sa, ca, ga, sb, cb, gb = (mod[:, 0].clone(), mod[:, 1].clone(), mod[:, 2].clone(), mod[:, 3].clone(), mod[:, 4].clone(), mod[:, 5].clone())
    h = _layernorm(x, axis=-1) * (1 + ca) + sa
    x = x + ga * _A_ref(h, A_k_cache, A_v_cache, A_wq, A_wo)
    h = _layernorm(x, axis=-1) * (1 + cb) + sb
    x = x + gb * _B_ref(h, B_w1, B_w3, B_w2)
    return x
```

```python
import re

_TRANS = ("v_exp_f32", "v_log_f32", "v_rcp_f32", "v_rsq_f32", "v_sqrt_f32", "v_sin_f32", "v_cos_f32")


def _split_ops(s):
    out, depth, cur = [], 0, ""
    for ch in s:
        if ch == "[":
            depth += 1
        elif ch == "]":
            depth -= 1
        if ch == "," and depth == 0:
            out.append(cur.strip())
            cur = ""
        else:
            cur += ch
    if cur.strip():
        out.append(cur.strip())
    return out


_REG = re.compile(r"^-?(?:abs\()?([vs])(\d+)\)?$")
_RNG = re.compile(r"^-?([vs])\[(\d+):(\d+)\]$")


def regs_of(tok):
    tok = tok.split()[0] if tok else tok
    m = _REG.match(tok)
    if m:
        return {(m.group(1), int(m.group(2)))}
    m = _RNG.match(tok)
    if m:
        return {(m.group(1), i) for i in range(int(m.group(2)), int(m.group(3)) + 1)}
    if tok == "vcc":
        return {("s", 106), ("s", 107)}
    if tok == "exec":
        return {("s", 126), ("s", 127)}
    return set()


class Ins:
    __slots__ = ("text", "op", "cls", "w", "r", "trans", "dpp", "perml", "rdlane", "dot", "wide_store", "states",
                 "srcc", "label")

    def __init__(self, text):
        self.text = text
        self.label = text.endswith(":")
        self.w, self.r = set(), set()
        self.trans = self.dpp = self.perml = self.rdlane = self.dot = False
        self.wide_store = set()
        self.srcc = set()
        self.states = 1
        self.cls = "other"
        if self.label or text.startswith(".") or text.startswith(";"):
            self.states = 0
            self.op = ""
            return
        parts = text.split(None, 1)
        self.op = op = parts[0]
        ops = _split_ops(parts[1]) if len(parts) > 1 else []
        R = [regs_of(o) for o in ops]
        if op == "s_nop":
            self.states = int(ops[0], 0) + 1
            self.cls = "salu"
        elif op.startswith("v_mfma"):
            self.cls = "mfma"
            self.w = R[0]
            self.r = R[1] | R[2]
            self.srcc = R[3]
        elif op.startswith("v_"):
            self.cls = "valu"
            base = op.replace("_e32", "").replace("_e64", "").replace("_dpp", "")
            self.dpp = "_dpp" in op
            self.trans = base in _TRANS
            self.dot = base.startswith("v_dot")
            if base.startswith("v_permlane"):
                self.perml = True
                self.w = R[0] | R[1]
                self.r = R[0] | R[1]
            else:
                self.w = R[0]
                for x in R[1:]:
                    self.r |= x
                if base in ("v_fmac_f32", "v_dot2c_f32_bf16", "v_writelane_b32") or self.dpp:
                    self.r |= R[0]
                if base == "v_cndmask_b32" and len(ops) == 3:
                    self.r |= regs_of("vcc")
            self.rdlane = base in ("v_readlane_b32", "v_readfirstlane_b32")
            assert not base.startswith("v_cmpx"), "cmpx not modelled"
            assert "_co_" not in base, "carry ops not modelled"
        elif op.startswith("buffer_load"):
            self.cls = "vmem"
            self.w = R[0]
            for x in R[1:]:
                self.r |= x
        elif op.startswith("buffer_store") or op.startswith("buffer_atomic"):
            self.cls = "vmem"
            for x in R:
                self.r |= x
            if "x4" in op or "x3" in op:
                self.wide_store = R[0]
        elif op.startswith("ds_read") or op.startswith("ds_bpermute") or op.startswith("ds_swizzle"):
            self.cls = "ds"
            self.w = R[0]
            for x in R[1:]:
                self.r |= x
        elif op.startswith("ds_"):
            self.cls = "ds"
            for x in R:
                self.r |= x
        elif op.startswith("s_"):
            self.cls = "salu"
        else:
            raise ValueError("unknown instruction class: " + text)


def _v(s):
    return {x for x in s if x[0] == "v"}


def _s(s):
    return {x for x in s if x[0] == "s"}


def need(p, c):
    n = 0
    if p.cls == "valu":
        pv, ps = _v(p.w), _s(p.w)
        if c.cls == "mfma" and pv & (c.r | c.srcc):
            n = max(n, 2)
        if c.cls == "valu":
            if c.dpp and pv & c.r:
                n = max(n, 2)
            if c.perml and pv & c.r:
                n = max(n, 2)
            if c.rdlane and pv & c.r:
                n = max(n, 1)
            if p.trans and not c.trans and pv & c.r:
                n = max(n, 1)
            if p.dot and pv & (c.r | c.w):
                if not c.dot:
                    n = max(n, 3)
                elif pv & (c.r - c.w):
                    n = max(n, 3)
            if ps & c.r:
                n = max(n, 4 if (c.rdlane or c.op.startswith("v_writelane")) else 2)
        if p.dot and c.cls in ("vmem", "ds", "mfma") and pv & (c.r | c.srcc):
            n = max(n, 3)
        if c.cls == "vmem" and ps & c.r:
            n = max(n, 5)
    elif p.cls == "mfma":
        if c.cls == "mfma":
            if p.w & c.r:
                n = max(n, 8)
            if p.w & c.srcc and p.w != c.srcc:
                n = max(n, 6)
            if p.w & c.w and p.w != c.srcc:
                n = max(n, 8)
        elif c.cls in ("valu", "vmem", "ds"):
            if p.w & (c.r | c.w):
                n = max(n, 8)
            if c.cls == "valu" and p.srcc & c.w:
                n = max(n, 3)
    elif p.cls == "vmem" and p.wide_store:
        if p.wide_store & c.w:
            n = max(n, 2 if c.cls in ("valu", "mfma") else 1)
    return n


class Asm:
    def __init__(self):
        self.lines = []
        self._n = 0

    def __call__(self, text):
        for t in text.strip().split("\n"):
            t = t.split(";")[0].strip()
            if t:
                self.lines.append(t)

    def label(self, name):
        self.lines.append(name + ":")

    def newlabel(self, base="L"):
        self._n += 1
        return f"{base}_{self._n}"

    def finish(self):
        out = []
        hist = []
        pos = 0
        nnop = 0
        for t in self.lines:
            ins = Ins(t)
            if ins.states == 0:
                out.append(t if ins.label else "    " + t)
                continue
            req = 0
            for p, at in hist:
                k = need(p, ins)
                if k:
                    have = pos - at - 1
                    req = max(req, k - have)
            if req > 0:
                out.append(f"    s_nop {req - 1}")
                pos += req
                nnop += req
            out.append("    " + t)
            hist.append((ins, pos))
            pos += ins.states
            hist = [(p, at) for p, at in hist if pos - at < 24]
        self.nnop = nnop
        return "\n".join(out)
```

```python
import sys
import os
sys.path.insert(0, os.path.dirname(os.path.abspath(__file__)))
from asmlib import Asm

NAME = "adaLN_cond__sliding_block_cached__glu_gated_swiglu__decode"

WS_MOD = 0x1000
WS_Q = 0x10000
WS_ML = 0x20000
WS_X1 = 0x24000
WS_O = 0x40000
PSTR = 16384 + 256
WS_P3 = 0x100000
WS_P6 = 0x240000
WS_STAMP = 0x400000
WS_SIZE = 0x500000

LOG2E = 0x3FB8AA3B
NLOG2E = 0xBFB8AA3B
SCALE = 0x3DB504F3
EPS = 0x3727C5AC
INV512 = 0x3B000000

S_W, S_G, S_R, S_TAG, S_TO, S_LO, S_HI, S_MASK, S_ONES = "s3", "s4", "s5", "s6", "s7", "s8", "s9", "s10", "s11"
WS = "s[44:47]"
DPPF = "row_mask:0xf bank_mask:0xf"


def vr(a, n):
    return f"v[{a}:{a + n - 1}]" if n > 1 else f"v{a}"


class Gen:
    def __init__(self, diag=False, lds=81920, nt=True, opts=None):
        self.a = Asm()
        self.diag = diag
        self.lds = lds
        self.nt = " nt" if nt else ""
        self.nst = 0
        self.o = opts or {}

    def stamp(self, i):
        if self.diag:
            self.a(f"s_memrealtime s[{80 + 2 * i}:{81 + 2 * i}]")

    def dump_stamps(self, n=11):
        a = self.a
        if not self.diag:
            return
        a("s_waitcnt lgkmcnt(0)")
        a("s_mov_b64 exec, -1")
        a("v_mov_b32 v10, 0")
        for i in range(2 * n):
            a(f"v_writelane_b32 v10, s{80 + i}, {i}")
        a(f"s_lshl_b32 s12, s2, 3")
        a(f"s_add_u32 s12, s12, {S_W}")
        a(f"s_lshl_b32 s12, s12, 7")
        a(f"s_add_u32 s12, s12, {WS_STAMP}")
        a("v_lshlrev_b32 v11, 2, v1")
        a("s_mov_b64 exec, 0xffffffff")
        a(f"buffer_store_dword v10, v11, {WS}, s12 offen")
        a("s_waitcnt vmcnt(0)")

    def srd(self, d, ptr, size, off_sgpr=None):
        a = self.a
        if off_sgpr is None:
            a(f"s_mov_b32 s{d}, s{ptr}")
            a(f"s_mov_b32 s{d + 1}, s{ptr + 1}")
        else:
            a(f"s_add_u32 s{d}, s{ptr}, {off_sgpr}")
            a(f"s_addc_u32 s{d + 1}, s{ptr + 1}, 0")
        a(f"s_mov_b32 s{d + 2}, {size}")
        a(f"s_mov_b32 s{d + 3}, 0x00020000")

    def take_epoch(self):
        a = self.a
        a(f"v_readfirstlane_b32 {S_TAG}, v4")
        a("s_nop 3")
        a(f"s_add_u32 {S_TAG}, {S_TAG}, 1")
        a(f"v_mov_b32 v4, {S_TAG}")

    def poll(self, loads, tags, acc, sleep=0, pre=None):
        a = self.a
        lp, dn = a.newlabel("Lpoll"), a.newlabel("Lgot")
        a.label(lp)
        for l in loads:
            a(l)
        a("s_waitcnt vmcnt(0)")
        for i, t in enumerate(tags):
            a(f"v_sad_u32 v{acc}, v{t}, {S_TAG}, " + ("0" if i == 0 else f"v{acc}"))
        a(f"v_cmp_ne_u32 vcc, 0, v{acc}")
        a(f"s_cbranch_vccz {dn}")
        if sleep:
            a(f"s_sleep {sleep}")
        a(f"s_sub_u32 {S_TO}, {S_TO}, 1")
        a(f"s_cbranch_scc0 {lp}")
        a("s_branch L_exit")
        a.label(dn)

    def unpack(self, lo, hi, src):
        self.a(f"v_lshlrev_b32 v{lo}, 16, v{src}")
        self.a(f"v_and_b32 v{hi}, {S_MASK}, v{src}")

    def round_pairs(self, regs, tmps):
        a = self.a
        for i in range(0, len(regs), 2):
            a(f"v_cvt_pk_bf16_f32 v{tmps[i // 2]}, v{regs[i]}, v{regs[i + 1]}")
        for i in range(0, len(regs), 2):
            self.unpack(regs[i], regs[i + 1], tmps[i // 2])

    def row_reduce(self, op, regs):
        for n in (8, 4, 2, 1):
            for r in regs:
                self.a(f"{op}_dpp v{r}, v{r}, v{r} row_ror:{n} {DPPF}")

    def xrow_reduce(self, op, regs, tmps):
        a = self.a
        for sw in ("v_permlane16_swap_b32", "v_permlane32_swap_b32"):
            for r, t in zip(regs, tmps):
                a(f"v_mov_b32 v{t}, v{r}")
            for r, t in zip(regs, tmps):
                a(f"{sw} v{r}, v{t}")
            for r, t in zip(regs, tmps):
                a(f"{op} v{r}, v{r}, v{t}")

    def ln_params(self, S, Q, t):
        a = self.a
        a(f"v_mul_f32 v{S}, {INV512:#x}, v{S}")
        a(f"v_mul_f32 v{Q}, {INV512:#x}, v{Q}")
        a(f"v_fma_f32 v{Q}, -v{S}, v{S}, v{Q}")
        a(f"v_max_f32 v{Q}, 0, v{Q}")
        a(f"v_cvt_pk_bf16_f32 v{t}, v{S}, v{Q}")
        self.unpack(S, Q, t)
        a(f"v_add_f32 v{Q}, {EPS:#x}, v{Q}")
        a(f"v_cvt_pk_bf16_f32 v{t}, v{Q}, v{Q}")
        a(f"v_lshlrev_b32 v{Q}, 16, v{t}")
        a(f"v_sqrt_f32 v{Q}, v{Q}")
        a(f"v_cvt_pk_bf16_f32 v{t}, v{Q}, v{Q}")
        a(f"v_lshlrev_b32 v{Q}, 16, v{t}")
        a(f"v_rcp_f32 v{Q}, v{Q}")

    def ln_apply(self, xs, M, R, tmps):
        a = self.a
        for x in xs:
            a(f"v_sub_f32 v{x}, v{x}, v{M}")
        self.round_pairs(xs, tmps)
        for x in xs:
            a(f"v_mul_f32 v{x}, v{x}, v{R}")
        self.round_pairs(xs, tmps)

    def modulate_pack(self, xs, c1, sh, tmps, out):
        a = self.a
        for x, c in zip(xs, c1):
            a(f"v_mul_f32 v{x}, v{x}, v{c}")
        self.round_pairs(xs, tmps)
        for x, s in zip(xs, sh):
            a(f"v_add_f32 v{x}, v{x}, v{s}")
        a(f"v_cvt_pk_bf16_f32 v{out}, v{xs[0]}, v{xs[1]}")
        a(f"v_cvt_pk_bf16_f32 v{out + 1}, v{xs[2]}, v{xs[3]}")

    def silu(self, xs, tmps):
        a = self.a
        for x, t in zip(xs, tmps):
            a(f"v_mul_f32 v{t}, {NLOG2E:#x}, v{x}")
        for t in tmps:
            a(f"v_exp_f32 v{t}, v{t}")
        for t in tmps:
            a(f"v_add_f32 v{t}, 1.0, v{t}")
        for t in tmps:
            a(f"v_rcp_f32 v{t}, v{t}")
        for x, t in zip(xs, tmps):
            a(f"v_mul_f32 v{x}, v{x}, v{t}")

    def g32_loads(self, raw, voff, srd, sbase, stride):
        a = self.a
        for s in range(2):
            for i in range(8):
                a(f"buffer_load_dword v{raw + 8 * s + i}, v{voff}, {srd}, {sbase} offen{self.nt}")
                if not (s == 1 and i == 7):
                    step = stride if i < 7 else stride * 25
                    a(f"s_add_u32 {sbase}, {sbase}, {step}")

    def g32_perm(self, raw, T):
        a = self.a
        for s in range(2):
            for j in range(2):
                for p in range(4):
                    sel = S_HI if j else S_LO
                    a(f"v_perm_b32 v{T + 8 * s + 4 * j + p}, v{raw + 8 * s + 2 * p + 1}, v{raw + 8 * s + 2 * p}, {sel}")

    def g32_mfma(self, T, A, D):
        a = self.a
        for s in range(2):
            for j in range(2):
                c = "0" if s == 0 else vr(D + 4 * j, 4)
                a(f"v_mfma_f32_16x16x32_bf16 {vr(D + 4 * j, 4)}, {vr(A + 4 * s, 4)}, {vr(T + 8 * s + 4 * j, 4)}, {c}")

    def g64_perm(self, raw, T, nsteps):
        a = self.a
        for s in range(nsteps):
            for jj in range(4):
                for p in range(4):
                    sel = S_HI if jj & 1 else S_LO
                    r0 = raw + 16 * s + 2 * (2 * p) + (jj >> 1)
                    r1 = raw + 16 * s + 2 * (2 * p + 1) + (jj >> 1)
                    a(f"v_perm_b32 v{T + 16 * s + 4 * jj + p}, v{r1}, v{r0}, {sel}")

    def g64_mfma(self, T, A, D, nsteps):
        a = self.a
        for s in range(nsteps):
            for jj in range(4):
                c = "0" if s == 0 else vr(D + 4 * jj, 4)
                a(f"v_mfma_f32_16x16x32_bf16 {vr(D + 4 * jj, 4)}, {vr(A + 4 * s, 4)}, {vr(T + 16 * s + 4 * jj, 4)}, {c}")

    def beta64(self, dst, tmp):
        a = self.a
        a(f"v_lshrrev_b32 v{tmp}, 2, v2")
        a(f"v_add_u32 v{tmp}, v{tmp}, v2")
        a(f"v_and_b32 v{tmp}, 3, v{tmp}")
        a(f"v_lshlrev_b32 v{dst}, 6, v{tmp}")
        a(f"v_lshl_add_u32 v{dst}, v3, 4, v{dst}")

    def publish_partials(self, D, out, voff, soff):
        a = self.a
        for jj in range(4):
            a(f"v_mov_b32 v{out + 2 * jj}, v{D + 4 * jj}")
        a(f"buffer_store_dwordx4 {vr(out, 4)}, v{voff}, {WS}, {soff} offen sc1")
        a(f"buffer_store_dwordx4 {vr(out + 4, 4)}, v{voff}, {WS}, {soff} offen offset:16 sc1")

    def prologue(self):
        a = self.a
        a("s_cmp_ge_u32 s2, 256")
        a("s_cbranch_scc1 L_end")
        a("s_load_dwordx16 s[16:31], s[0:1], 0")
        a("s_load_dwordx8 s[32:39], s[0:1], 64")
        a("s_load_dwordx4 s[40:43], s[0:1], 96")
        self.stamp(0)
        a("v_lshrrev_b32 v5, 6, v0")
        a("v_and_b32 v1, 63, v0")
        a(f"v_readfirstlane_b32 {S_W}, v5")
        a("v_and_b32 v2, 15, v0")
        a("v_lshrrev_b32 v3, 4, v1")
        a(f"s_and_b32 {S_G}, s2, 7")
        a(f"s_lshr_b32 {S_R}, s2, 3")
        a(f"s_mov_b32 {S_TO}, 400000")
        a(f"s_mov_b32 {S_LO}, 0x05040100")
        a(f"s_mov_b32 {S_HI}, 0x07060302")
        a(f"s_mov_b32 {S_MASK}, 0xffff0000")
        a(f"s_mov_b32 {S_ONES}, 0x3f803f80")
        a("s_waitcnt lgkmcnt(0)")
        self.srd(44, 42, WS_SIZE)
        a(f"buffer_load_dword v4, off, {WS}, 0 sc1")
        a(f"s_cmp_lt_u32 {S_R}, 8")
        a("s_cbranch_scc1 L_roleC")
        a(f"s_cmp_lt_u32 {S_R}, 16")
        a("s_cbranch_scc1 L_roleB")

    def role_a(self):
        a = self.a
        VR, KK, VT = 16, 48, 80
        a.label("L_roleA")
        a(f"s_sub_u32 s12, {S_R}, 16")
        a("s_lshr_b32 s13, s12, 2")
        a("s_and_b32 s14, s12, 3")
        a(f"s_lshl_b32 s15, s13, 3")
        a(f"s_add_u32 s15, s15, {S_G}")
        a("s_lshl_b32 s68, s15, 20")
        a("s_lshl_b32 s69, s14, 16")
        a("s_add_u32 s68, s68, s69")
        a(f"s_add_u32 s68, s68, {3072 * 256}")
        self.srd(48, 20, 65536, "s68")
        self.srd(52, 18, 65536, "s68")
        a("s_movk_i32 s70, 0x1000")
        a(f"s_lshl_b32 s69, {S_W}, 13")
        a("v_lshlrev_b32 v6, 10, v3")
        a("v_lshl_add_u32 v6, v2, 4, v6")
        a("v_add_u32 v6, s69, v6")
        a("v_lshlrev_b32 v5, 8, v2")
        a("v_lshl_add_u32 v5, v3, 4, v5")
        a("v_add_u32 v5, s69, v5")
        a(f"s_lshl_b32 s71, {S_G}, 4")
        a("s_add_u32 s71, s71, s12")
        a("s_lshr_b32 s72, s71, 5")
        a("s_and_b32 s73, s71, 31")
        self.srd(56, 16, 4096)
        a("s_lshl_b32 s74, s72, 10")
        a("s_lshl_b32 s75, s73, 5")
        a("s_add_u32 s74, s74, s75")
        a("v_and_b32 v113, 7, v1")
        a("v_lshlrev_b32 v113, 2, v113")
        a("buffer_load_dword v112, v113, s[56:59], s74 offen")
        for i in range(8):
            so = "0" if i < 4 else "s70"
            a(f"buffer_load_dwordx4 {vr(VR + 4 * i, 4)}, v6, s[48:51], {so} offen offset:{(i & 3) * 256}{self.nt}")
        for t in range(2):
            for i in range(4):
                so = "0" if t == 0 else "s70"
                a(f"buffer_load_dwordx4 {vr(KK + 16 * t + 4 * i, 4)}, v5, s[52:55], {so} offen offset:{i * 64}{self.nt}")
        self.stamp(1)
        a("v_and_b32 v7, 3, v1")
        a("v_lshlrev_b32 v7, 9, v7")
        a("v_lshrrev_b32 v8, 2, v2")
        a("v_lshl_add_u32 v7, v8, 7, v7")
        a("v_lshl_add_u32 v7, v3, 5, v7")
        a("s_lshl_b32 s76, s13, 14")
        a(f"s_lshl_b32 s77, {S_G}, 11")
        a("s_add_u32 s76, s76, s77")
        a(f"s_add_u32 s76, s76, {WS_Q}")
        a(f"s_mul_i32 s77, {S_W}, 2112")
        a("v_mul_u32_u24 v9, 528, v2")
        a("v_lshl_add_u32 v9, v3, 7, v9")
        a("v_add_u32 v9, s77, v9")
        a(f"s_lshl_b32 s77, {S_W}, 3")
        a("v_lshlrev_b32 v10, 6, v2")
        a("v_add_u32 v10, s77, v10")
        a("s_waitcnt vmcnt(17)")
        self.take_epoch()
        a("s_waitcnt vmcnt(8)")
        self.stamp(2)
        for j in range(8):
            for p in range(4):
                sel = S_HI if j & 1 else S_LO
                a(f"v_perm_b32 v{VT + 4 * j + p}, v{VR + 4 * (2 * p + 1) + (j >> 1)}, v{VR + 4 * (2 * p) + (j >> 1)}, {sel}")
        self.poll([f"buffer_load_dwordx4 v[16:19], v7, {WS}, s76 offen sc1",
                   f"buffer_load_dwordx4 v[20:23], v7, {WS}, s76 offen offset:16 sc1"],
                  [17, 19, 21, 23], 11)
        self.stamp(3)
        BQ = 24
        for i in range(4):
            for p in range(4):
                if i == 0:
                    a(f"v_mov_b32 v{BQ + p}, v{16 + 2 * p}")
                else:
                    a(f"v_mov_b32_dpp v{BQ + 4 * i + p}, v{16 + 2 * p} row_shl:{4 * i} {DPPF}")
        for i in range(4):
            for t in range(2):
                c = "0" if i == 0 else vr(40 + 4 * t, 4)
                a(f"v_mfma_f32_16x16x32_bf16 {vr(40 + 4 * t, 4)}, {vr(KK + 16 * t + 4 * i, 4)}, {vr(BQ + 4 * i, 4)}, {c}")
        S = list(range(40, 48))
        T4 = [12, 13, 14, 15]
        self.round_pairs(S, T4)
        for x in S:
            a(f"v_mul_f32 v{x}, {SCALE:#x}, v{x}")
        self.round_pairs(S, T4)
        for x in S:
            a(f"v_mul_f32 v{x}, {LOG2E:#x}, v{x}")
        a("v_max3_f32 v12, v40, v41, v42")
        a("v_max3_f32 v13, v43, v44, v45")
        a("v_max3_f32 v12, v12, v46, v47")
        a("v_max_f32 v12, v12, v13")
        self.xrow_reduce("v_max_f32", [12], [13])
        for x in S:
            a(f"v_sub_f32 v{x}, v{x}, v12")
        for x in S:
            a(f"v_exp_f32 v{x}, v{x}")
        for p in range(4):
            a(f"v_cvt_pk_bf16_f32 v{16 + p}, v{40 + 2 * p}, v{41 + 2 * p}")
        for j in range(8):
            a(f"v_mfma_f32_16x16x32_bf16 {vr(KK + 4 * j, 4)}, {vr(VT + 4 * j, 4)}, v[16:19], 0")
        a("v_add_f32 v13, v40, v41")
        a("v_add_f32 v14, v42, v43")
        a("v_add_f32 v15, v44, v45")
        a("v_add_f32 v20, v46, v47")
        a("v_add_f32 v13, v13, v14")
        a("v_add_f32 v15, v15, v20")
        a("v_add_f32 v13, v13, v15")
        self.xrow_reduce("v_add_f32", [13], [14])
        a("s_mov_b32 exec_lo, 0x000f000f")
        a("s_mov_b32 exec_hi, 0x000f000f")
        for j in range(8):
            a(f"ds_write_b128 v9, {vr(KK + 4 * j, 4)} offset:{16 * j}")
        a("s_mov_b64 exec, 15")
        a("ds_write_b64 v10, v[12:13] offset:16896")
        a("s_mov_b64 exec, -1")
        a("s_waitcnt lgkmcnt(0)")
        a("s_barrier")
        self.stamp(4)
        a(f"s_cmp_ge_u32 {S_W}, 4")
        a("s_cbranch_scc1 L_exit")
        a(f"s_mul_i32 s77, {S_W}, 528")
        a("v_lshlrev_b32 v9, 3, v1")
        a("v_add_u32 v9, s77, v9")
        a(f"s_lshl_b32 s77, {S_W}, 6")
        a("v_lshlrev_b32 v10, 1, v113")
        a("v_add_u32 v10, s77, v10")
        a("ds_read_b64 v[32:33], v10 offset:16896")
        for w in range(8):
            a(f"ds_read_b64 {vr(16 + 2 * w, 2)}, v9 offset:{2112 * w}")
        a("s_lshl_b32 s78, s15, 2")
        a("s_add_u32 s78, s78, s14")
        a("s_lshl_b32 s79, s78, 2")
        a(f"s_add_u32 s79, s79, {S_W}")
        a("s_lshl_b32 s78, s79, 10")
        a(f"s_add_u32 s78, s78, {WS_O}")
        a("s_lshl_b32 s79, s79, 4")
        a(f"s_add_u32 s79, s79, {WS_ML}")
        a("v_lshlrev_b32 v11, 4, v1")
        a("v_mov_b32 v37, v4")
        a("v_mov_b32 v39, v4")
        a("v_mov_b32 v41, v4")
        a("v_mov_b32 v43, v4")
        a("s_waitcnt lgkmcnt(8)")
        a(f"v_max_f32_dpp v40, v32, v32 quad_perm:[1,0,3,2] {DPPF}")
        a(f"v_max_f32_dpp v40, v40, v40 quad_perm:[2,3,0,1] {DPPF}")
        a(f"v_max_f32_dpp v40, v40, v40 row_half_mirror {DPPF}")
        a("v_sub_f32 v34, v32, v40")
        a("v_exp_f32 v34, v34")
        a("v_mul_f32 v42, v34, v33")
        for w in range(8):
            a(f"v_readlane_b32 s{60 + w}, v34, {w}")
        a(f"v_add_f32_dpp v42, v42, v42 quad_perm:[1,0,3,2] {DPPF}")
        a(f"v_add_f32_dpp v42, v42, v42 quad_perm:[2,3,0,1] {DPPF}")
        a(f"v_add_f32_dpp v42, v42, v42 row_half_mirror {DPPF}")
        a("s_waitcnt lgkmcnt(0)")
        a("v_mul_f32 v36, s60, v16")
        a("v_mul_f32 v38, s60, v17")
        for w in range(1, 8):
            a(f"v_fmac_f32 v36, s{60 + w}, v{16 + 2 * w}")
            a(f"v_fmac_f32 v38, s{60 + w}, v{17 + 2 * w}")
        a(f"buffer_store_dwordx4 v[36:39], v11, {WS}, s78 offen sc1")
        a("s_mov_b64 exec, 1")
        a(f"buffer_store_dwordx4 v[40:43], off, {WS}, s79 sc1")
        a("s_mov_b64 exec, -1")
        self.stamp(5)
        a(f"s_cmp_lg_u32 {S_W}, 0")
        a("s_cbranch_scc1 L_exit")
        a("s_mul_i32 s60, s72, 12288")
        a("s_lshl_b32 s61, s73, 6")
        a("s_add_u32 s60, s60, s61")
        a(f"s_add_u32 s60, s60, {WS_MOD + 512 * 8}")
        a(f"s_add_u32 s61, s60, {768 * 8}")
        a("v_lshlrev_b32 v10, 1, v113")
        self.poll([f"buffer_load_dwordx2 v[114:115], v10, {WS}, s60 offen sc1",
                   f"buffer_load_dwordx2 v[116:117], v10, {WS}, s61 offen sc1"], [115, 117], 11)
        self.unpack(118, 119, 112)
        self.unpack(120, 121, 114)
        self.unpack(122, 123, 116)
        a("v_lshrrev_b32 v7, 3, v1")
        a(f"s_mov_b32 s62, {PSTR}")
        a("v_mul_lo_u32 v7, v7, s62")
        a("v_lshl_add_u32 v7, v113, 2, v7")
        a("s_lshl_b32 s62, s72, 12")
        a("s_lshl_b32 s63, s73, 7")
        a("s_add_u32 s62, s62, s63")
        a("v_add_u32 v7, s62, v7")
        a("s_lshl_b32 s78, s72, 11")
        a("s_lshl_b32 s79, s73, 6")
        a("s_add_u32 s78, s78, s79")
        a(f"s_add_u32 s78, s78, {WS_X1}")
        self.srd(56, 38, 4096)
        a("v_mov_b32 v13, v4")

        def reduce_stage(base, n, gate):
            for i in range(n):
                a(f"s_mov_b32 s{60 + i}, {base + 8 * i * PSTR}")
            loads = [f"buffer_load_dwordx4 {vr(48 + 4 * i, 4)}, v7, {WS}, s{60 + i} offen sc1" for i in range(n)]
            tags = [48 + 4 * i + k for i in range(n) for k in (1, 3)]
            self.poll(loads, tags, 11)
            for i in range(1, n):
                a(f"v_add_f32 v48, v48, v{48 + 4 * i}")
                a(f"v_add_f32 v50, v50, v{50 + 4 * i}")
            a(f"v_add_f32_dpp v48, v48, v48 row_ror:8 {DPPF}")
            a(f"v_add_f32_dpp v50, v50, v50 row_ror:8 {DPPF}")
            self.xrow_reduce("v_add_f32", [48, 50], [49, 51])
            self.round_pairs([48, 50], [49])
            a(f"v_mul_f32 v48, v48, v{gate}")
            a(f"v_mul_f32 v50, v50, v{gate + 1}")
            self.round_pairs([48, 50], [49])
            a("v_add_f32 v48, v48, v118")
            a("v_add_f32 v50, v50, v119")
            a("v_cvt_pk_bf16_f32 v12, v48, v50")

        self.stamp(6)
        reduce_stage(WS_P3, 8, 120)
        a("s_mov_b64 exec, 0xff")
        a(f"buffer_store_dwordx2 v[12:13], v10, {WS}, s78 offen sc1")
        a("s_mov_b64 exec, -1")
        self.stamp(7)
        self.unpack(118, 119, 12)
        reduce_stage(WS_P6, 7, 122)
        a("s_mov_b64 exec, 0xff")
        a("buffer_store_dword v12, v113, s[56:59], s74 offen")
        a("s_mov_b64 exec, -1")
        self.stamp(8)
        a("s_cmp_lg_u32 s71, 0")
        a("s_cbranch_scc1 L_exit")
        a("s_mov_b64 exec, 1")
        a(f"buffer_store_dword v4, off, {WS}, 0 sc1")
        a("s_branch L_exit")

    def role_b(self):
        a = self.a
        RAW, T = 16, 48
        a.label("L_roleB")
        a(f"s_lshl_b32 s12, {S_G}, 3")
        a(f"s_add_u32 s12, s12, {S_R}")
        a("s_sub_u32 s12, s12, 8")
        self.srd(56, 16, 4096)
        a("s_lshl_b32 s13, s12, 7")
        self.srd(48, 22, 512 * 8192 - 128 * 63, "s13")
        a("v_lshlrev_b32 v5, 10, v3")
        a("v_lshl_add_u32 v6, v2, 6, v5")
        for i in range(4):
            a(f"buffer_load_dwordx4 {vr(80 + 4 * i, 4)}, v6, s[56:59], 0 offen offset:{16 * i}")
        a(f"s_lshl_b32 s14, {S_W}, 7")
        a("v_lshl_add_u32 v6, v2, 3, v5")
        a("buffer_load_dwordx2 v[96:97], v6, s[56:59], s14 offen")
        a("v_lshlrev_b32 v7, 16, v3")
        a("v_lshl_add_u32 v7, v2, 3, v7")
        a(f"s_lshl_b32 s15, {S_W}, 19")
        for s in range(2):
            for i in range(8):
                a(f"buffer_load_dwordx2 {vr(RAW + 16 * s + 2 * i, 2)}, v7, s[48:51], s15 offen{self.nt}")
                if not (s == 1 and i == 7):
                    a(f"s_add_u32 s15, s15, {8192 if i < 7 else 8192 * 25}")
        self.stamp(1)
        a(f"s_lshl_b32 s68, {S_W}, 8")
        a(f"s_add_u32 s68, s68, {WS_MOD}")
        a("s_add_u32 s69, s68, 2048")
        a("v_mul_u32_u24 v8, 12288, v3")
        a("v_lshl_add_u32 v8, v2, 4, v8")
        a(f"s_lshl_b32 s70, {S_W}, 9")
        a("v_lshrrev_b32 v9, 3, v2")
        a("v_lshlrev_b32 v9, 8, v9")
        a("v_lshl_add_u32 v9, v3, 6, v9")
        a("v_and_b32 v10, 7, v2")
        a("v_lshl_add_u32 v9, v10, 3, v9")
        a("v_add_u32 v9, s70, v9")
        self.beta64(12, 10)
        a("v_add_u32 v13, s70, v12")
        a(f"s_lshl_b32 s71, {S_W}, 10")
        a("s_add_u32 s71, s71, 4096")
        a("v_lshlrev_b32 v14, 8, v3")
        a("v_lshl_add_u32 v14, v2, 4, v14")
        a("v_add_u32 v14, s71, v14")
        a("s_waitcnt vmcnt(16)")
        self.take_epoch()
        a("v_mov_b32 v102, 0")
        a("v_mov_b32 v103, 0")
        for i in range(16):
            a(f"v_dot2c_f32_bf16 v102, {S_ONES}, v{80 + i}")
            a(f"v_dot2c_f32_bf16 v103, v{80 + i}, v{80 + i}")
        self.row_reduce("v_add_f32", [102, 103])
        self.ln_params(102, 103, 10)
        self.unpack(98, 99, 96)
        self.unpack(100, 101, 97)
        self.ln_apply([98, 99, 100, 101], 102, 103, [10, 11])
        a("s_waitcnt vmcnt(0)")
        self.stamp(2)
        self.g64_perm(RAW, T, 2)
        self.poll([f"buffer_load_dwordx4 v[80:83], v8, {WS}, s68 offen sc1",
                   f"buffer_load_dwordx4 v[84:87], v8, {WS}, s69 offen sc1"], [81, 83, 85, 87], 11)
        self.stamp(3)
        self.unpack(104, 105, 84)
        self.unpack(106, 107, 86)
        for x in (104, 105, 106, 107):
            a(f"v_add_f32 v{x}, 1.0, v{x}")
        self.round_pairs([104, 105, 106, 107], [10, 11])
        self.unpack(108, 109, 80)
        self.unpack(110, 111, 82)
        self.modulate_pack([98, 99, 100, 101], [104, 105, 106, 107], [108, 109, 110, 111], [10, 11], 80)
        a("ds_write_b64 v9, v[80:81]")
        a("ds_read_b128 v[88:91], v13")
        a("ds_read_b128 v[92:95], v13 offset:256")
        a("s_waitcnt lgkmcnt(0)")
        self.g64_mfma(T, 88, 16, 2)
        a("s_lshl_b32 s13, s12, 16")
        self.srd(52, 24, 65536, "s13")
        a(f"s_lshl_b32 s14, {S_W}, 7")
        a("v_lshlrev_b32 v7, 11, v3")
        a("v_lshl_add_u32 v7, v2, 3, v7")
        a("v_add_u32 v7, s14, v7")
        a("ds_write2_b32 v14, v16, v20 offset0:0 offset1:1")
        a("ds_write2_b32 v14, v24, v28 offset0:2 offset1:3")
        a("s_waitcnt lgkmcnt(0)")
        a("s_barrier")
        a(f"s_cmp_ge_u32 {S_W}, 2")
        a("s_cbranch_scc1 L_B_wo")
        a("v_lshlrev_b32 v10, 3, v0")
        for w in range(8):
            a(f"ds_read_b64 {vr(80 + 2 * w, 2)}, v10 offset:{4096 + 1024 * w}")
        a("v_lshrrev_b32 v11, 5, v0")
        a("v_lshlrev_b32 v11, 14, v11")
        a("v_and_b32 v15, 31, v0")
        a("v_lshl_add_u32 v11, v15, 3, v11")
        a("s_lshl_b32 s13, s12, 8")
        a(f"s_add_u32 s13, s13, {WS_Q}")
        a("v_mov_b32 v97, v4")
        for w in range(1, 8):
            a(f"s_waitcnt lgkmcnt({7 - w})")
            a(f"v_add_f32 v80, v80, v{80 + 2 * w}")
            a(f"v_add_f32 v81, v81, v{81 + 2 * w}")
        a("v_cvt_pk_bf16_f32 v96, v80, v81")
        a(f"buffer_store_dwordx2 v[96:97], v11, {WS}, s13 offen sc1")
        self.stamp(4)
        a.label("L_B_wo")
        for s in range(2):
            for i in range(8):
                if (i >> 2) == 0:
                    a(f"s_mov_b32 s{72 + (i & 3)}, {(32 * s + 8 * (i & 3)) * 1024}")
                a(f"buffer_load_dwordx2 {vr(RAW + 16 * s + 2 * i, 2)}, v7, s[52:55], s{72 + (i & 3)} offen offset:{(i >> 2) * 1024}{self.nt}")
        a("v_lshrrev_b32 v5, 7, v0")
        a("v_and_b32 v6, 3, v0")
        a("v_lshl_add_u32 v8, v5, 5, v6")
        a("v_bfe_u32 v9, v0, 2, 5")
        a("v_lshlrev_b32 v10, 12, v8")
        a("v_lshl_add_u32 v10, v9, 4, v10")
        a("v_lshlrev_b32 v15, 6, v8")
        a(f"s_lshl_b32 s13, {S_G}, 14")
        a("s_and_b32 s14, s12, 7")
        a("s_lshl_b32 s14, s14, 9")
        a("s_add_u32 s13, s13, s14")
        a(f"s_add_u32 s68, s13, {WS_O}")
        a(f"s_lshl_b32 s13, {S_G}, 8")
        a("s_lshr_b32 s14, s12, 1")
        a("s_and_b32 s14, s14, 3")
        a("s_lshl_b32 s14, s14, 4")
        a("s_add_u32 s13, s13, s14")
        a(f"s_add_u32 s69, s13, {WS_ML}")
        a("v_lshrrev_b32 v13, 4, v9")
        a("v_lshlrev_b32 v13, 8, v13")
        a("v_lshl_add_u32 v13, v5, 6, v13")
        a("v_and_b32 v9, 15, v9")
        a("v_lshl_add_u32 v13, v9, 2, v13")
        a(f"s_mul_i32 s70, s12, {PSTR}")
        a(f"s_lshl_b32 s71, {S_W}, 9")
        a("s_add_u32 s70, s70, s71")
        a(f"s_add_u32 s70, s70, {WS_P3}")
        a("v_lshlrev_b32 v14, 12, v3")
        a("v_lshl_add_u32 v14, v2, 5, v14")
        for k in range(4):
            a(f"v_mov_b32 v{97 + 2 * k}, v4")
        a("s_waitcnt vmcnt(0)")
        self.stamp(5)
        self.g64_perm(RAW, T, 2)
        self.poll([f"buffer_load_dwordx4 v[80:83], v10, {WS}, s68 offen sc1",
                   f"buffer_load_dwordx4 v[84:87], v15, {WS}, s69 offen sc1"], [81, 83, 85, 87], 11)
        self.stamp(6)
        a(f"v_max_f32_dpp v88, v84, v84 quad_perm:[1,0,3,2] {DPPF}")
        a(f"v_max_f32_dpp v88, v88, v88 quad_perm:[2,3,0,1] {DPPF}")
        a("v_sub_f32 v88, v84, v88")
        a("v_exp_f32 v88, v88")
        a("v_mul_f32 v86, v86, v88")
        a("v_mul_f32 v80, v80, v88")
        a("v_mul_f32 v82, v82, v88")
        for qp in ("[1,0,3,2]", "[2,3,0,1]"):
            for x in (86, 80, 82):
                a(f"v_add_f32_dpp v{x}, v{x}, v{x} quad_perm:{qp} {DPPF}")
        a("v_rcp_f32 v86, v86")
        a("v_mul_f32 v80, v80, v86")
        a("v_mul_f32 v82, v82, v86")
        a("v_cvt_pk_bf16_f32 v80, v80, v82")
        a("ds_write_b32 v13, v80 offset:12288")
        a("s_waitcnt lgkmcnt(0)")
        a("s_barrier")
        a("ds_read_b128 v[88:91], v12 offset:12288")
        a("ds_read_b128 v[92:95], v12 offset:12544")
        a("s_waitcnt lgkmcnt(0)")
        self.g64_mfma(T, 88, 16, 2)
        self.publish_partials(16, 96, 14, "s70")
        self.stamp(7)
        a("s_branch L_exit")

    def mod_publish(self, red, gran_base_sgpr):
        a = self.a
        for w in range(8):
            a(f"ds_read_b64 {vr(16 + 2 * w, 2)}, v13 offset:{red + 512 * w}")
        a("v_mov_b32 v33, v4")
        for w in range(1, 8):
            a(f"s_waitcnt lgkmcnt({7 - w})")
            a(f"v_add_f32 v16, v16, v{16 + 2 * w}")
            a(f"v_add_f32 v17, v17, v{17 + 2 * w}")
        a("v_cvt_pk_bf16_f32 v32, v16, v17")
        a(f"buffer_store_dwordx2 v[32:33], v15, {WS}, {gran_base_sgpr} offen sc1")

    def role_c(self):
        a = self.a
        RED, H2, RED2, HH, REDZ = 4096, 8192, 12800, 21248, 24576
        a.label("L_roleC")
        a(f"s_lshl_b32 s12, {S_G}, 3")
        a(f"s_add_u32 s12, s12, {S_R}")
        self.srd(48, 34, 4096)
        self.srd(52, 36, 512 * 6144)
        a(f"s_lshl_b32 s13, {S_W}, 7")
        a("v_lshlrev_b32 v5, 10, v3")
        a("v_lshl_add_u32 v5, v2, 3, v5")
        a("buffer_load_dwordx2 v[8:9], v5, s[48:51], s13 offen")
        a(f"s_mul_i32 s13, {S_W}, {64 * 6144}")
        a(f"v_mul_u32_u24 v6, {8 * 6144}, v3")
        a("v_lshl_add_u32 v6, v2, 2, v6")
        a("v_add_u32 v6, s13, v6")
        a("s_cmp_lt_u32 s12, 32")
        a("s_cbranch_scc1 L_C_uload")
        a("s_waitcnt vmcnt(0)")
        a("s_branch L_C_silu")
        a.label("L_C_uload")
        a("s_lshl_b32 s14, s12, 6")
        self.g32_loads(16, 6, "s[52:55]", "s14", 6144)
        a("s_waitcnt vmcnt(16)")
        a.label("L_C_silu")
        self.stamp(1)
        self.take_epoch()
        self.unpack(56, 57, 8)
        self.unpack(58, 59, 9)
        self.silu([56, 57, 58, 59], [60, 61, 62, 63])
        a("v_cvt_pk_bf16_f32 v8, v56, v57")
        a("v_cvt_pk_bf16_f32 v9, v58, v59")
        a(f"s_lshl_b32 s70, {S_W}, 9")
        a("v_lshrrev_b32 v10, 3, v2")
        a("v_lshlrev_b32 v10, 8, v10")
        a("v_lshl_add_u32 v10, v3, 6, v10")
        a("v_and_b32 v11, 7, v2")
        a("v_lshl_add_u32 v10, v11, 3, v10")
        a("v_add_u32 v10, s70, v10")
        self.beta64(12, 11)
        a("v_add_u32 v11, s70, v12")
        a("ds_write_b64 v10, v[8:9]")
        a("ds_read_b128 v[48:51], v11")
        a("ds_read_b128 v[52:55], v11 offset:256")
        a("v_lshlrev_b32 v13, 3, v1")
        a("v_add_u32 v14, s70, v13")
        a("v_mul_u32_u24 v15, 12288, v3")
        a("v_lshl_add_u32 v15, v2, 3, v15")
        a("s_lshl_b32 s71, s12, 7")
        a(f"s_add_u32 s71, s71, {WS_MOD}")
        a(f"s_add_u32 s72, s71, {512 * 8}")
        a("s_cmp_ge_u32 s12, 32")
        a("s_cbranch_scc1 L_C_trig")
        a("s_waitcnt vmcnt(0)")
        self.stamp(2)
        self.g32_perm(16, 32)
        a("s_waitcnt lgkmcnt(0)")
        self.g32_mfma(32, 48, 56)
        a("ds_write2_b32 v14, v56, v60 offset0:0 offset1:1")
        a("s_waitcnt lgkmcnt(0)")
        a("s_barrier")
        a(f"s_cmp_lg_u32 {S_W}, 0")
        a("s_cbranch_scc1 L_C_trig")
        self.mod_publish(0, "s71")
        self.stamp(3)
        a.label("L_C_trig")
        a("s_lshl_b32 s13, s12, 8")
        a(f"s_add_u32 s13, s13, {WS_Q}")
        self.poll([f"buffer_load_dwordx2 v[10:11], off, {WS}, s13 sc1"], [11], 10, sleep=2)
        self.stamp(4)
        a("s_lshl_b32 s14, s12, 6")
        a("s_add_u32 s14, s14, 2048")
        self.g32_loads(16, 6, "s[52:55]", "s14", 6144)
        a("s_cmp_lt_u32 s12, 56")
        a("s_cbranch_scc1 L_C_wload")
        a("s_waitcnt vmcnt(0)")
        a("s_branch L_C_z")
        a.label("L_C_wload")
        self.srd(56, 28, 512 * 3584)
        self.srd(60, 30, 512 * 3584)
        self.srd(64, 32, 1792 * 1024)
        a(f"s_mul_i32 s13, {S_W}, {64 * 3584}")
        a(f"v_mul_u32_u24 v7, {8 * 3584}, v3")
        a("v_lshl_add_u32 v7, v2, 2, v7")
        a("v_add_u32 v7, s13, v7")
        a("s_lshl_b32 s14, s12, 6")
        self.g32_loads(64, 7, "s[56:59]", "s14", 3584)
        a("s_lshl_b32 s14, s12, 6")
        self.g32_loads(96, 7, "s[60:63]", "s14", 3584)
        a(f"s_lshl_b32 s13, {S_W}, 7")
        a("v_lshlrev_b32 v7, 13, v3")
        a("v_lshl_add_u32 v7, v2, 3, v7")
        a("v_add_u32 v7, s13, v7")
        a("s_lshl_b32 s14, s12, 15")
        a("s_add_u32 s15, s14, 4096")
        for i in range(8):
            a(f"buffer_load_dwordx2 {vr(112 + 2 * i, 2)}, v7, s[64:67], {'s14' if i < 4 else 's15'} offen offset:{(i & 3) * 1024}{self.nt}")
        a("s_waitcnt vmcnt(40)")
        a.label("L_C_z")
        self.g32_perm(16, 32)
        self.g32_mfma(32, 48, 56)
        a(f"v_add_u32 v10, {REDZ}, v14")
        a("ds_write2_b32 v10, v56, v60 offset0:0 offset1:1")
        a("s_waitcnt lgkmcnt(0)")
        a("s_barrier")
        a(f"s_cmp_lg_u32 {S_W}, 0")
        a("s_cbranch_scc1 L_C_zdone")
        self.mod_publish(REDZ, "s72")
        a.label("L_C_zdone")
        self.stamp(5)
        a("s_cmp_ge_u32 s12, 56")
        a("s_cbranch_scc1 L_exit")
        a("s_waitcnt vmcnt(24)")
        self.g32_perm(64, 80)
        a("s_waitcnt vmcnt(8)")
        self.g32_perm(96, 64)
        a("s_waitcnt vmcnt(0)")
        self.g64_perm(112, 96, 1)
        self.stamp(6)
        a(f"s_and_b32 s13, {S_W}, 3")
        a(f"s_lshr_b32 s14, {S_W}, 2")
        a("s_mul_i32 s15, s13, 12288")
        a("s_lshl_b32 s68, s14, 4")
        a("s_add_u32 s15, s15, s68")
        a(f"s_add_u32 s68, s15, {WS_MOD + 1024 * 8}")
        a(f"s_add_u32 s69, s15, {WS_MOD + 768 * 8}")
        a("v_lshlrev_b32 v5, 5, v1")
        self.poll([f"buffer_load_dwordx4 v[16:19], v5, {WS}, s68 offen sc1",
                   f"buffer_load_dwordx4 v[20:23], v5, {WS}, s69 offen sc1"], [17, 19, 21, 23], 11, sleep=1)
        self.unpack(24, 25, 16)
        self.unpack(26, 27, 18)
        for x in (24, 25, 26, 27):
            a(f"v_add_f32 v{x}, 1.0, v{x}")
        self.round_pairs([24, 25, 26, 27], [10, 11])
        self.unpack(28, 29, 20)
        self.unpack(30, 31, 22)
        a("s_lshl_b32 s68, s13, 11")
        a(f"s_add_u32 s68, s68, {WS_X1}")
        a("s_mul_i32 s69, s13, 1088")
        a("s_lshl_b32 s70, s14, 3")
        a("s_add_u32 s69, s69, s70")
        a("v_lshlrev_b32 v6, 4, v1")
        a("v_add_u32 v6, s69, v6")
        a("v_lshrrev_b32 v7, 6, v12")
        a("v_mul_u32_u24 v7, 1088, v7")
        a("v_lshl_add_u32 v7, v3, 4, v7")
        a(f"s_lshl_b32 s70, {S_W}, 7")
        a("v_add_u32 v7, s70, v7")
        a(f"v_add_u32 v8, {RED2}, v14")
        a(f"v_add_u32 v9, {RED2 + 4096}, v14")
        a("v_lshrrev_b32 v15, 5, v1")
        a("v_lshlrev_b32 v15, 12, v15")
        a("v_and_b32 v13, 31, v1")
        a("v_lshl_add_u32 v15, v13, 2, v15")
        a(f"s_lshl_b32 s70, s13, 7")
        a("v_add_u32 v15, s70, v15")
        a("s_lshl_b32 s70, s13, 6")
        a("v_lshlrev_b32 v13, 1, v13")
        a("v_add_u32 v13, s70, v13")
        a(f"s_mul_i32 s70, s12, {PSTR}")
        a(f"s_lshl_b32 s71, {S_W}, 9")
        a("s_add_u32 s70, s70, s71")
        a(f"s_add_u32 s70, s70, {WS_P6}")
        a("v_lshlrev_b32 v14, 12, v3")
        a("v_lshl_add_u32 v14, v2, 5, v14")
        for k in range(4):
            a(f"v_mov_b32 v{113 + 2 * k}, v4")
        self.stamp(7)
        self.poll([f"buffer_load_dwordx4 v[16:19], v5, {WS}, s68 offen sc1",
                   f"buffer_load_dwordx4 v[20:23], v5, {WS}, s68 offen offset:16 sc1"], [17, 19, 21, 23], 11)
        self.stamp(8)
        a("v_mov_b32 v32, 0")
        a("v_mov_b32 v33, 0")
        for x in (16, 18, 20, 22):
            a(f"v_dot2c_f32_bf16 v32, {S_ONES}, v{x}")
            a(f"v_dot2c_f32_bf16 v33, v{x}, v{x}")
        lh = a.newlabel("Lhalf")
        a("s_cmp_eq_u32 s14, 0")
        a(f"s_cbranch_scc1 {lh}")
        a("v_mov_b32 v16, v20")
        a("v_mov_b32 v18, v22")
        a.label(lh)
        self.unpack(34, 35, 16)
        self.unpack(36, 37, 18)
        self.row_reduce("v_add_f32", [32, 33])
        self.xrow_reduce("v_add_f32", [32, 33], [10, 11])
        self.ln_params(32, 33, 10)
        self.ln_apply([34, 35, 36, 37], 32, 33, [10, 11])
        self.modulate_pack([34, 35, 36, 37], [24, 25, 26, 27], [28, 29, 30, 31], [10, 11], 16)
        a(f"ds_write_b64 v6, v[16:17] offset:{H2}")
        a("s_waitcnt lgkmcnt(0)")
        a("s_barrier")
        a(f"ds_read_b128 v[48:51], v7 offset:{H2}")
        a(f"ds_read_b128 v[52:55], v7 offset:{H2 + 64}")
        a("s_waitcnt lgkmcnt(0)")
        self.g32_mfma(80, 48, 16)
        self.g32_mfma(64, 48, 24)
        a("ds_write2_b32 v8, v16, v20 offset0:0 offset1:1")
        a("ds_write2_b32 v9, v24, v28 offset0:0 offset1:1")
        a("s_waitcnt lgkmcnt(0)")
        a("s_barrier")
        a(f"s_cmp_ge_u32 {S_W}, 4")
        a("s_cbranch_scc1 L_C_s5")
        for w in range(8):
            a(f"ds_read_b32 v{16 + w}, v15 offset:{RED2 + 512 * w}")
        for w in range(1, 8):
            a(f"s_waitcnt lgkmcnt({7 - w})")
            a(f"v_add_f32 v16, v16, v{16 + w}")
        a("v_cvt_pk_bf16_f32 v16, v16, v16")
        a("v_lshlrev_b32 v16, 16, v16")
        a("v_mov_b32 v17, v16")
        a("v_permlane32_swap_b32 v16, v17")
        self.silu([16], [18])
        a("v_cvt_pk_bf16_f32 v16, v16, v16")
        a("v_lshlrev_b32 v16, 16, v16")
        a("v_mul_f32 v16, v16, v17")
        a("v_cvt_pk_bf16_f32 v16, v16, v16")
        a(f"ds_write_b16 v13, v16 offset:{HH}")
        a("s_waitcnt lgkmcnt(0)")
        a.label("L_C_s5")
        a("s_barrier")
        a(f"ds_read_b128 v[48:51], v12 offset:{HH}")
        a("s_waitcnt lgkmcnt(0)")
        self.g64_mfma(96, 48, 16, 1)
        self.publish_partials(16, 112, 14, "s70")
        self.stamp(9)
        a("s_branch L_exit")

    def build(self):
        a = self.a
        self.prologue()
        self.role_a()
        self.role_b()
        self.role_c()
        a.label("L_exit")
        self.stamp(10)
        self.dump_stamps()
        a.label("L_end")
        a("s_endpgm")
        body = a.finish()
        ref = open(os.path.join(os.path.dirname(os.path.abspath(__file__)), "..", "cdna_kernels", NAME + ".s.ref")).read()
        head = [l for l in ref.splitlines() if l.startswith(";") and "@launch" not in l]
        txt = "\n".join(head) + f"\n; @launch grid=(256,1,1) block=(512,1,1) lds={self.lds}\n"
        txt += f""".amdgcn_target "amdgcn-amd-amdhsa--gfx950"
.text
.globl {NAME}_kernel
.p2align 8
.type {NAME}_kernel,@function
{NAME}_kernel:
{body}
.section .rodata,"a"
.p2align 6
.amdhsa_kernel {NAME}_kernel
  .amdhsa_next_free_vgpr 128
  .amdhsa_next_free_sgpr 102
  .amdhsa_accum_offset 128
  .amdhsa_group_segment_fixed_size 0
  .amdhsa_kernarg_size 112
  .amdhsa_user_sgpr_count 2
  .amdhsa_user_sgpr_kernarg_segment_ptr 1
  .amdhsa_system_sgpr_workgroup_id_x 1
  .amdhsa_float_denorm_mode_32 3
.end_amdhsa_kernel
"""
        return txt


if __name__ == "__main__":
    import argparse
    ap = argparse.ArgumentParser()
    ap.add_argument("-o", default=None)
    ap.add_argument("--diag", action="store_true")
    ap.add_argument("--no-nt", action="store_true")
    ap.add_argument("--lds", type=int, default=81920)
    args = ap.parse_args()
    g = Gen(diag=args.diag, lds=args.lds, nt=not args.no_nt)
    txt = g.build()
    out = args.o or os.path.join(os.path.dirname(os.path.abspath(__file__)), "..", "cdna_kernels", NAME + ".s")
    open(out, "w").write(txt)
    print("wrote", out, "nops:", g.a.nnop, "lines:", txt.count("\n"))
```

```python
import re

_TRANS = ("v_exp_f32", "v_log_f32", "v_rcp_f32", "v_rsq_f32", "v_sqrt_f32", "v_sin_f32", "v_cos_f32")


def _split_ops(s):
    out, depth, cur = [], 0, ""
    for ch in s:
        if ch == "[":
            depth += 1
        elif ch == "]":
            depth -= 1
        if ch == "," and depth == 0:
            out.append(cur.strip())
            cur = ""
        else:
            cur += ch
    if cur.strip():
        out.append(cur.strip())
    return out


_REG = re.compile(r"^-?(?:abs\()?([vs])(\d+)\)?$")
_RNG = re.compile(r"^-?([vs])\[(\d+):(\d+)\]$")


def regs_of(tok):
    tok = tok.split()[0] if tok else tok
    m = _REG.match(tok)
    if m:
        return {(m.group(1), int(m.group(2)))}
    m = _RNG.match(tok)
    if m:
        return {(m.group(1), i) for i in range(int(m.group(2)), int(m.group(3)) + 1)}
    if tok == "vcc":
        return {("s", 106), ("s", 107)}
    if tok == "exec":
        return {("s", 126), ("s", 127)}
    return set()


class Ins:
    __slots__ = ("text", "op", "cls", "w", "r", "trans", "dpp", "perml", "rdlane", "dot", "wide_store", "states",
                 "srcc", "label")

    def __init__(self, text):
        self.text = text
        self.label = text.endswith(":")
        self.w, self.r = set(), set()
        self.trans = self.dpp = self.perml = self.rdlane = self.dot = False
        self.wide_store = set()
        self.srcc = set()
        self.states = 1
        self.cls = "other"
        if self.label or text.startswith(".") or text.startswith(";"):
            self.states = 0
            self.op = ""
            return
        parts = text.split(None, 1)
        self.op = op = parts[0]
        ops = _split_ops(parts[1]) if len(parts) > 1 else []
        R = [regs_of(o) for o in ops]
        if op == "s_nop":
            self.states = int(ops[0], 0) + 1
            self.cls = "salu"
        elif op.startswith("v_mfma"):
            self.cls = "mfma"
            self.w = R[0]
            self.r = R[1] | R[2]
            self.srcc = R[3]
        elif op.startswith("v_"):
            self.cls = "valu"
            base = op.replace("_e32", "").replace("_e64", "").replace("_dpp", "")
            self.dpp = "_dpp" in op
            self.trans = base in _TRANS
            self.dot = base.startswith("v_dot")
            if base.startswith("v_permlane"):
                self.perml = True
                self.w = R[0] | R[1]
                self.r = R[0] | R[1]
            else:
                self.w = R[0]
                for x in R[1:]:
                    self.r |= x
                if base in ("v_fmac_f32", "v_dot2c_f32_bf16", "v_writelane_b32") or self.dpp:
                    self.r |= R[0]
                if base == "v_cndmask_b32" and len(ops) == 3:
                    self.r |= regs_of("vcc")
            self.rdlane = base in ("v_readlane_b32", "v_readfirstlane_b32")
            assert not base.startswith("v_cmpx"), "cmpx not modelled"
            assert "_co_" not in base, "carry ops not modelled"
        elif op.startswith("buffer_load") and text.rstrip().endswith(" lds"):
            self.cls = "vmem"
            for x in R:
                self.r |= x
        elif op.startswith("buffer_load"):
            self.cls = "vmem"
            self.w = R[0]
            for x in R[1:]:
                self.r |= x
        elif op.startswith("buffer_store") or op.startswith("buffer_atomic"):
            self.cls = "vmem"
            for x in R:
                self.r |= x
            if "x4" in op or "x3" in op:
                self.wide_store = R[0]
        elif op.startswith("ds_read") or op.startswith("ds_bpermute") or op.startswith("ds_swizzle"):
            self.cls = "ds"
            self.w = R[0]
            for x in R[1:]:
                self.r |= x
        elif op.startswith("ds_"):
            self.cls = "ds"
            for x in R:
                self.r |= x
        elif op.startswith("s_"):
            self.cls = "salu"
        else:
            raise ValueError("unknown instruction class: " + text)


def _v(s):
    return {x for x in s if x[0] == "v"}


def _s(s):
    return {x for x in s if x[0] == "s"}


def need(p, c):
    n = 0
    if p.cls == "valu":
        pv, ps = _v(p.w), _s(p.w)
        if c.cls == "mfma" and pv & (c.r | c.srcc):
            n = max(n, 2)
        if c.cls == "valu":
            if c.dpp and pv & c.r:
                n = max(n, 2)
            if c.perml and pv & c.r:
                n = max(n, 2)
            if c.rdlane and pv & c.r:
                n = max(n, 1)
            if p.trans and not c.trans and pv & c.r:
                n = max(n, 1)
            if p.dot and pv & (c.r | c.w):
                if not c.dot:
                    n = max(n, 3)
                elif pv & (c.r - c.w):
                    n = max(n, 3)
            if ps & c.r:
                n = max(n, 4 if (c.rdlane or c.op.startswith("v_writelane")) else 2)
        if p.dot and c.cls in ("vmem", "ds", "mfma") and pv & (c.r | c.srcc):
            n = max(n, 3)
        if c.cls == "vmem" and ps & c.r:
            n = max(n, 5)
    elif p.cls == "mfma":
        if c.cls == "mfma":
            if p.w & c.r:
                n = max(n, 8)
            if p.w & c.srcc and p.w != c.srcc:
                n = max(n, 6)
            if p.w & c.w and p.w != c.srcc:
                n = max(n, 8)
        elif c.cls in ("valu", "vmem", "ds"):
            if p.w & (c.r | c.w):
                n = max(n, 8)
            if c.cls == "valu" and p.srcc & c.w:
                n = max(n, 3)
    elif p.cls == "vmem" and p.wide_store:
        if p.wide_store & c.w:
            n = max(n, 2 if c.cls in ("valu", "mfma") else 1)
    return n


class Asm:
    def __init__(self):
        self.lines = []
        self._n = 0

    def __call__(self, text):
        for t in text.strip().split("\n"):
            t = t.split(";")[0].strip()
            if t:
                self.lines.append(t)

    def label(self, name):
        self.lines.append(name + ":")

    def newlabel(self, base="L"):
        self._n += 1
        return f"{base}_{self._n}"

    def finish(self):
        out = []
        hist = []
        pos = 0
        nnop = 0
        for t in self.lines:
            ins = Ins(t)
            if ins.states == 0:
                out.append(t if ins.label else "    " + t)
                continue
            req = 0
            for p, at in hist:
                k = need(p, ins)
                if k:
                    have = pos - at - 1
                    req = max(req, k - have)
            if req > 0:
                out.append(f"    s_nop {req - 1}")
                pos += req
                nnop += req
            out.append("    " + t)
            hist.append((ins, pos))
            pos += ins.states
            hist = [(p, at) for p, at in hist if pos - at < 24]
        self.nnop = nnop
        return "\n".join(out)
```

```python
import sys
import os
sys.path.insert(0, os.path.dirname(os.path.abspath(__file__)))
from asmlib import Asm

NAME = "adaLN_cond__sliding_block_cached__glu_gated_swiglu__decode"

WS_MOD = 0x1000
WS_Q = 0x10000
WS_ML = 0x20000
WS_X1 = 0x24000
WS_O = 0x40000
PSTR = 8192 + 256
WS_P3 = 0x100000
WS_P6 = 0x1A0000
LOFF = 0x280000
WS_STAMP = 0x400000
WS_SIZE = 0x500000
NP6 = 56

LOG2E = 0x3FB8AA3B
NLOG2E = 0xBFB8AA3B
SCALE = 0x3DB504F3
EPS = 0x3727C5AC
INV512 = 0x3B000000

S_W, S_G, S_R, S_TAG, S_TO, S_LO, S_HI, S_MASK, S_ONES, S_T8, S_M8 = \
    "s3", "s4", "s5", "s6", "s7", "s8", "s9", "s10", "s11", "s100", "s101"
WS = "s[44:47]"
DPPF = "row_mask:0xf bank_mask:0xf"
NSTAMP = 10

ROLES = {"CU": [w for w in range(64) if (w & 7) * 8 + (w >> 3) < 32],
         "CZ": [w for w in range(64) if 32 <= (w & 7) * 8 + (w >> 3) < 56],
         "A": list(range(64, 192)), "B": list(range(192, 256))}
NWG = 256


def vr(a, n):
    return f"v[{a}:{a + n - 1}]" if n > 1 else f"v{a}"


class Gen:
    def __init__(self, diag=False, lds=131072, opts=None):
        self.a = Asm()
        self.diag = diag
        self.lds = lds
        self.nt = " nt"
        self.o = opts or {}
        self.dry = self.o.get("dry", False)

    def stamp(self, i):
        if self.diag:
            self.a(f"s_memrealtime s[{80 + 2 * i}:{81 + 2 * i}]")

    def dump_stamps(self):
        a = self.a
        if not self.diag:
            return
        a("s_waitcnt lgkmcnt(0)")
        a("s_mov_b64 exec, -1")
        a("v_mov_b32 v10, 0")
        for i in range(2 * NSTAMP):
            a(f"v_writelane_b32 v10, s{80 + i}, {i}")
        a("s_getreg_b32 s12, hwreg(HW_REG_XCC_ID)")
        a("v_writelane_b32 v10, s12, 30")
        a("s_lshl_b32 s12, s2, 3")
        a(f"s_add_u32 s12, s12, {S_W}")
        a("s_lshl_b32 s12, s12, 7")
        a(f"s_add_u32 s12, s12, {WS_STAMP}")
        a("v_lshlrev_b32 v11, 2, v1")
        a("s_mov_b64 exec, 0xffffffff")
        a(f"buffer_store_dword v10, v11, {WS}, s12 offen")
        a("s_waitcnt vmcnt(0)")

    def skip_begin(self):
        if not self.dry:
            return None
        l = self.a.newlabel("Lskip")
        self.a(f"s_cbranch_execz {l}")
        return l

    def skip_end(self, l):
        if l:
            self.a.label(l)

    def dry_start(self, name):
        a = self.a
        if self.dry:
            a(f"s_cmp_lg_u32 {S_W}, 0")
            a(f"s_cbranch_scc1 {name}")
            a("s_mov_b64 exec, 0")
        a.label(name)

    def dry_end(self, name, real_target="L_exit"):
        a = self.a
        if self.dry:
            a(f"s_cbranch_execnz {real_target}")
            a("s_mov_b64 exec, -1")
            a(f"s_branch {name}")
        elif real_target == "L_exit":
            a("s_branch L_exit")

    def real(self, *lines):
        l = self.skip_begin()
        for x in lines:
            self.a(x)
        self.skip_end(l)

    def srd(self, d, ptr, size, off_sgpr=None):
        a = self.a
        if off_sgpr is None:
            a(f"s_mov_b32 s{d}, s{ptr}")
            a(f"s_mov_b32 s{d + 1}, s{ptr + 1}")
        else:
            a(f"s_add_u32 s{d}, s{ptr}, {off_sgpr}")
            a(f"s_addc_u32 s{d + 1}, s{ptr + 1}, 0")
        a(f"s_mov_b32 s{d + 2}, {size}")
        a(f"s_mov_b32 s{d + 3}, 0x00020000")

    def take_epoch(self):
        a = self.a
        a(f"v_readfirstlane_b32 {S_TAG}, v4")
        a("s_nop 3")
        a(f"s_and_b32 {S_T8}, {S_TAG}, 0xff")
        a(f"s_add_u32 {S_T8}, {S_T8}, 1")
        a(f"s_cmp_eq_u32 {S_T8}, 0x100")
        a(f"s_cselect_b32 {S_T8}, 1, {S_T8}")
        a(f"s_add_u32 {S_TAG}, {S_TAG}, 0x100")
        a(f"s_andn2_b32 {S_TAG}, {S_TAG}, 0xff")
        a(f"s_or_b32 {S_TAG}, {S_TAG}, {S_T8}")
        a(f"v_mov_b32 v4, {S_TAG}")
        a(f"v_mov_b32 v5, {S_T8}")

    def poll(self, loads, tags, acc, sleep=0, tags8=(), depth=None, alt=()):
        a = self.a
        depth = self.o.get("pdepth", 1) if depth is None else depth
        n = sum(1 for l in loads if l.startswith("buffer_"))
        use_l = alt and self.o.get("lhop", 1)
        sk = self.skip_begin()
        lp, dn = a.newlabel("Lpoll"), a.newlabel("Lgot")
        for _ in range(depth - 1):
            for l in loads:
                a(l)
            a(f"s_sleep {self.o.get('pgap', 4)}")
        a.label(lp)
        if use_l:
            a(f"s_and_b32 s66, {S_TO}, 3")
            a(f"s_cselect_b32 s66, {LOFF}, 0")
            for k, r in enumerate(alt):
                a(f"s_add_u32 s{64 + k}, {r}, s66")
            for l in loads:
                for k, r in enumerate(alt):
                    l = l.replace(f", {r} ", f", s{64 + k} ")
                a(l)
        else:
            for l in loads:
                a(l)
        a(f"s_waitcnt vmcnt({n * (depth - 1)})")
        first = True
        for t in tags:
            a(f"v_sad_u32 v{acc}, v{t}, {S_TAG}, " + ("0" if first else f"v{acc}"))
            first = False
        for t in tags8:
            a(f"v_msad_u8 v{acc}, v{t}, {S_T8}, " + ("0" if first else f"v{acc}"))
            first = False
        a(f"v_cmp_ne_u32 vcc, 0, v{acc}")
        a(f"s_cbranch_vccz {dn}")
        if sleep:
            a(f"s_sleep {sleep}")
        a(f"s_sub_u32 {S_TO}, {S_TO}, 1")
        a(f"s_cbranch_scc0 {lp}")
        a("s_branch L_exit")
        a.label(dn)
        self.skip_end(sk)

    def dual_store(self, ins, soff):
        out = []
        if self.o.get("lhop", 1):
            out.append(f"s_add_u32 s66, {soff}, {LOFF}")
            out.append(ins.replace("{SO}", "s66").replace("{FL}", ""))
        out.append(ins.replace("{SO}", soff).replace("{FL}", " sc1"))
        return out

    def unpack(self, lo, hi, src):
        self.a(f"v_lshlrev_b32 v{lo}, 16, v{src}")
        self.a(f"v_and_b32 v{hi}, {S_MASK}, v{src}")

    def round_pairs(self, regs, tmps):
        a = self.a
        for i in range(0, len(regs), 2):
            a(f"v_cvt_pk_bf16_f32 v{tmps[i // 2]}, v{regs[i]}, v{regs[i + 1]}")
        for i in range(0, len(regs), 2):
            self.unpack(regs[i], regs[i + 1], tmps[i // 2])

    def round1(self, r):
        self.a(f"v_cvt_pk_bf16_f32 v{r}, v{r}, v{r}")
        self.a(f"v_lshlrev_b32 v{r}, 16, v{r}")

    def row_reduce(self, op, regs):
        for n in (8, 4, 2, 1):
            for r in regs:
                self.a(f"{op}_dpp v{r}, v{r}, v{r} row_ror:{n} {DPPF}")

    def xrow_reduce(self, op, regs, tmps):
        a = self.a
        for sw in ("v_permlane16_swap_b32", "v_permlane32_swap_b32"):
            for r, t in zip(regs, tmps):
                a(f"v_mov_b32 v{t}, v{r}")
            for r, t in zip(regs, tmps):
                a(f"{sw} v{r}, v{t}")
            for r, t in zip(regs, tmps):
                a(f"{op} v{r}, v{r}, v{t}")

    def ln_params(self, S, Q, t):
        a = self.a
        a(f"v_mul_f32 v{S}, {INV512:#x}, v{S}")
        a(f"v_mul_f32 v{Q}, {INV512:#x}, v{Q}")
        a(f"v_fma_f32 v{Q}, -v{S}, v{S}, v{Q}")
        a(f"v_max_f32 v{Q}, 0, v{Q}")
        a(f"v_cvt_pk_bf16_f32 v{t}, v{S}, v{Q}")
        self.unpack(S, Q, t)
        a(f"v_add_f32 v{Q}, {EPS:#x}, v{Q}")
        a(f"v_cvt_pk_bf16_f32 v{t}, v{Q}, v{Q}")
        a(f"v_lshlrev_b32 v{Q}, 16, v{t}")
        a(f"v_sqrt_f32 v{Q}, v{Q}")
        a(f"v_cvt_pk_bf16_f32 v{t}, v{Q}, v{Q}")
        a(f"v_lshlrev_b32 v{Q}, 16, v{t}")
        a(f"v_rcp_f32 v{Q}, v{Q}")

    def div_refine(self, x, d, r, q, t):
        a = self.a
        a(f"v_mul_f32 v{q}, v{x}, v{r}")
        a(f"v_fma_f32 v{t}, -v{q}, v{d}, v{x}")
        a(f"v_fma_f32 v{x}, v{t}, v{r}, v{q}")

    def g_loads(self, width, raw, voff, srd, sbase, stride, nsteps=2):
        a = self.a
        op = "buffer_load_dword" if width == 1 else "buffer_load_dwordx2"
        for s in range(nsteps):
            for i in range(8):
                a(f"{op} {vr(raw + width * (8 * s + i), width)}, v{voff}, {srd}, {sbase} offen{self.nt}")
                if not (s == nsteps - 1 and i == 7):
                    a(f"s_add_u32 {sbase}, {sbase}, {stride if i < 7 else stride * 25}")

    def dma(self, n, voff, srd, sbase, step, lds):
        a = self.a
        reg, add = lds
        for i in range(n):
            a(f"s_add_u32 m0, {reg}, {add + 1024 * i}")
            if i:
                a(f"s_add_u32 {sbase}, {sbase}, {step}")
            else:
                a("s_nop 0")
            a(f"buffer_load_dwordx4 v{voff}, {srd}, {sbase} offen{self.nt} lds")

    def readback(self, width, raw, addr, off, nsteps=2, rowmap=None):
        a = self.a
        rb = 64 * width
        rowmap = rowmap or (lambda s, i: 32 * s + i)
        for s in range(nsteps):
            for i in range(8):
                op = "ds_read_b32" if width == 1 else "ds_read_b64"
                a(f"{op} {vr(raw + width * (8 * s + i), width)}, v{addr} offset:{off + rowmap(s, i) * rb}")

    def g_perm(self, width, raw, T, nsteps=2):
        a = self.a
        for s in range(nsteps):
            for jj in range(2 * width):
                for p in range(4):
                    sel = S_HI if jj & 1 else S_LO
                    r0 = raw + width * (8 * s + 2 * p) + (jj >> 1)
                    r1 = raw + width * (8 * s + 2 * p + 1) + (jj >> 1)
                    a(f"v_perm_b32 v{T + 8 * width * s + 4 * jj + p}, v{r1}, v{r0}, {sel}")

    def g_mfma(self, width, T, A, D, nsteps=2):
        a = self.a
        for s in range(nsteps):
            for jj in range(2 * width):
                c = "0" if s == 0 else vr(D + 4 * jj, 4)
                a(f"v_mfma_f32_16x16x32_bf16 {vr(D + 4 * jj, 4)}, {vr(A + 4 * s, 4)}, {vr(T + 8 * width * s + 4 * jj, 4)}, {c}")

    def beta64(self, dst, tmp):
        a = self.a
        a(f"v_lshrrev_b32 v{tmp}, 2, v2")
        a(f"v_add_u32 v{tmp}, v{tmp}, v2")
        a(f"v_and_b32 v{tmp}, 3, v{tmp}")
        a(f"v_lshlrev_b32 v{dst}, 6, v{tmp}")
        a(f"v_lshl_add_u32 v{dst}, v3, 4, v{dst}")

    def opbuf_write_addr(self, dst, tmp, sbase):
        a = self.a
        a(f"v_lshrrev_b32 v{dst}, 3, v2")
        a(f"v_lshlrev_b32 v{dst}, 8, v{dst}")
        a(f"v_lshl_add_u32 v{dst}, v3, 6, v{dst}")
        a(f"v_and_b32 v{tmp}, 7, v2")
        a(f"v_lshl_add_u32 v{dst}, v{tmp}, 3, v{dst}")
        a(f"v_add_u32 v{dst}, {sbase}, v{dst}")

    def publish_dense4(self, D, out, voff, soff):
        a = self.a
        for jj in range(4):
            a(f"v_and_or_b32 v{out + jj}, v{D + 4 * jj}, {S_M8}, v5")
        self.real(f"buffer_store_dwordx4 {vr(out, 4)}, v{voff}, {WS}, {soff} offen sc1")

    def sum8_pack(self, base, addr, off0, stride, out):
        a = self.a
        for w in range(8):
            a(f"ds_read_b64 {vr(base + 2 * w, 2)}, v{addr} offset:{off0 + stride * w}")
        a("s_waitcnt lgkmcnt(4)")
        a(f"v_pk_add_f32 {vr(base, 2)}, {vr(base, 2)}, {vr(base + 2, 2)}")
        a(f"v_pk_add_f32 {vr(base + 4, 2)}, {vr(base + 4, 2)}, {vr(base + 6, 2)}")
        a("s_waitcnt lgkmcnt(0)")
        a(f"v_pk_add_f32 {vr(base + 8, 2)}, {vr(base + 8, 2)}, {vr(base + 10, 2)}")
        a(f"v_pk_add_f32 {vr(base + 12, 2)}, {vr(base + 12, 2)}, {vr(base + 14, 2)}")
        a(f"v_pk_add_f32 {vr(base, 2)}, {vr(base, 2)}, {vr(base + 4, 2)}")
        a(f"v_pk_add_f32 {vr(base + 8, 2)}, {vr(base + 8, 2)}, {vr(base + 12, 2)}")
        a(f"v_pk_add_f32 {vr(base, 2)}, {vr(base, 2)}, {vr(base + 8, 2)}")
        a(f"v_cvt_pk_bf16_f32 v{out}, v{base}, v{base + 1}")

    def wait_args(self):
        a = self.a
        a("s_waitcnt lgkmcnt(0)")
        self.srd(44, 42, WS_SIZE)
        a(f"buffer_load_dword v4, off, {WS}, 0 sc1")

    def prologue(self):
        a = self.a
        a("s_cmp_ge_u32 s2, 256")
        a("s_cbranch_scc1 L_end")
        a("s_load_dwordx16 s[16:31], s[0:1], 0")
        a("s_load_dwordx8 s[32:39], s[0:1], 64")
        a("s_load_dwordx4 s[40:43], s[0:1], 96")
        self.stamp(0)
        if self.o.get("cpf", 1):
            a("s_getpc_b64 s[48:49]")
            a("s_and_b32 s48, s48, 0xffffff00")
            a("s_mov_b32 s50, L_end-" + NAME + "_kernel")
            a("s_mov_b32 s51, 0x00020000")
            a("v_lshlrev_b32 v6, 5, v0")
            a("s_mov_b64 exec, 0x1111111111111111" if False else "s_mov_b32 exec_lo, 0x11111111")
            a("s_mov_b32 exec_hi, 0x11111111")
            a("buffer_load_dword v15, v6, s[48:51], 0 offen")
            a("s_mov_b64 exec, -1")
        a("v_lshrrev_b32 v5, 6, v0")
        a("v_and_b32 v1, 63, v0")
        a(f"v_readfirstlane_b32 {S_W}, v5")
        a("v_and_b32 v2, 15, v0")
        a("v_lshrrev_b32 v3, 4, v1")
        a(f"s_and_b32 {S_G}, s2, 7")
        a(f"s_lshr_b32 {S_R}, s2, 3")
        a(f"s_mov_b32 {S_TO}, 400003")
        a(f"s_mov_b32 {S_LO}, 0x05040100")
        a(f"s_mov_b32 {S_HI}, 0x07060302")
        a(f"s_mov_b32 {S_MASK}, 0xffff0000")
        a(f"s_mov_b32 {S_ONES}, 0x3f803f80")
        a(f"s_mov_b32 {S_M8}, 0xffffff00")
        a(f"s_cmp_lt_u32 {S_R}, 8")
        a("s_cbranch_scc1 L_roleC")
        a(f"s_cmp_ge_u32 {S_R}, 24")
        a("s_cbranch_scc1 L_roleB")

    def role_a(self):
        a = self.a
        VR, KK, VT, QR, BQ, SS, PP, OD = 16, 48, 80, 216, 136, 152, 160, 168
        KL = 32768
        a.label("L_roleA")
        a(f"s_sub_u32 s12, {S_R}, 8")
        a("s_lshr_b32 s13, s12, 2")
        a("s_and_b32 s14, s12, 3")
        a("s_lshl_b32 s15, s13, 3")
        a(f"s_add_u32 s15, s15, {S_G}")
        a("s_lshl_b32 s68, s15, 20")
        a("s_lshl_b32 s69, s14, 16")
        a("s_add_u32 s68, s68, s69")
        a(f"s_add_u32 s68, s68, {3072 * 256}")
        a(f"s_lshl_b32 s69, {S_W}, 13")
        a("s_add_u32 s70, s69, 0x1000")
        a("v_lshlrev_b32 v6, 10, v3")
        a("v_lshl_add_u32 v6, v2, 4, v6")
        a("v_lshlrev_b32 v7, 2, v3")
        a("v_xor_b32 v7, v2, v7")
        a("v_lshlrev_b32 v7, 4, v7")
        a("v_lshl_add_u32 v112, v3, 8, v7")
        for i in range(1, 4):
            a(f"v_xor_b32 v{112 + i}, {16 * i}, v112")
        a(f"s_add_u32 s71, s69, {KL}")
        a("s_mov_b32 m0, s71")
        self.wait_args()
        self.srd(52, 18, 65536, "s68")
        if self.o.get("asleep", 0):
            for _ in range(self.o["asleep"]):
                a("s_sleep 8")
        for t in range(2):
            if t:
                a("s_add_u32 m0, s71, 0x1000")
                a("s_nop 0")
            for i in range(4):
                a(f"buffer_load_dwordx4 v{112 + i}, s[52:55], {'s70' if t else 's69'} offen offset:{i * 1024}{self.nt} lds")
            athr = self.o.get("athr", 0)
            if (athr == 1 and t == 0) or (athr == 2 and t == 1):
                a("s_waitcnt vmcnt(0)")
                a("s_barrier")
        self.srd(48, 20, 65536, "s68")
        for i in range(8):
            a(f"buffer_load_dwordx4 {vr(VR + 4 * i, 4)}, v6, s[48:51], {'s69' if i < 4 else 's70'} offen offset:{(i & 3) * 256}{self.nt}")
        self.stamp(1)
        a("v_and_b32 v7, 3, v2")
        a("v_xor_b32 v7, v7, v3")
        a("v_lshlrev_b32 v7, 2, v7")
        a("v_lshrrev_b32 v8, 2, v2")
        a("v_or_b32 v7, v7, v8")
        a("v_lshlrev_b32 v7, 4, v7")
        a("v_lshl_add_u32 v116, v2, 8, v7")
        a("v_add_u32 v116, s71, v116")
        for i in range(1, 4):
            a(f"v_xor_b32 v{116 + i}, {16 * i}, v116")
        a(f"s_lshl_b32 s71, {S_G}, 4")
        a("s_add_u32 s71, s71, s12")
        a("s_lshr_b32 s72, s71, 5")
        a("s_and_b32 s73, s71, 31")
        a("s_lshl_b32 s74, s72, 10")
        a("s_lshl_b32 s75, s73, 5")
        a("s_add_u32 s74, s74, s75")
        a("v_and_b32 v8, 3, v1")
        a("v_and_b32 v9, 1, v3")
        a("v_lshlrev_b32 v9, 1, v9")
        a("v_lshrrev_b32 v10, 1, v3")
        a("v_add_u32 v9, v9, v10")
        a("v_lshl_add_u32 v9, v8, 2, v9")
        a("v_lshlrev_b32 v10, 1, v9")
        self.srd(56, 16, 4096)
        a("buffer_load_ushort v126, v10, s[56:59], s74 offen")
        self.srd(56, 38, 4096)
        a("v_lshrrev_b32 v125, 1, v9")
        a("v_lshlrev_b32 v125, 3, v125")
        a("v_and_b32 v124, 1, v9")
        a("v_lshlrev_b32 v124, 4, v124")
        a("v_lshlrev_b32 v113, 4, v8")
        a("v_lshl_add_u32 v113, v3, 3, v113")
        a("v_lshrrev_b32 v114, 1, v113")
        a("v_lshrrev_b32 v123, 2, v1")
        a(f"s_mov_b32 s75, {PSTR}")
        a("v_mul_lo_u32 v123, v123, s75")
        a("v_lshl_add_u32 v123, v8, 4, v123")
        a("s_lshl_b32 s75, s72, 11")
        a("s_lshl_b32 s76, s73, 6")
        a("s_add_u32 s75, s75, s76")
        a("v_add_u32 v123, s75, v123")
        a(f"s_add_u32 s75, s75, {WS_X1}")
        a("v_lshlrev_b32 v7, 5, v8")
        a("v_lshrrev_b32 v8, 2, v2")
        a("v_lshl_add_u32 v7, v8, 9, v7")
        a("v_lshl_add_u32 v7, v3, 7, v7")
        a("s_lshl_b32 s76, s13, 14")
        a(f"s_lshl_b32 s77, {S_G}, 11")
        a("s_add_u32 s76, s76, s77")
        a(f"s_add_u32 s76, s76, {WS_Q}")
        a(f"s_mul_i32 s77, {S_W}, 2112")
        a("v_mul_u32_u24 v9, 528, v8")
        a("v_lshl_add_u32 v9, v3, 7, v9")
        a("v_add_u32 v9, s77, v9")
        a(f"s_lshl_b32 s77, {S_W}, 3")
        a("v_lshlrev_b32 v10, 6, v8")
        a("v_add_u32 v10, s77, v10")
        a(f"s_mul_i32 s77, {S_W}, 528")
        a("v_lshlrev_b32 v122, 3, v1")
        a("v_add_u32 v120, s77, v122")
        a(f"s_lshl_b32 s77, {S_W}, 6")
        a("v_and_b32 v121, 7, v1")
        a("v_lshlrev_b32 v121, 3, v121")
        a("v_add_u32 v121, s77, v121")
        a("s_lshl_b32 s78, s15, 2")
        a("s_add_u32 s78, s78, s14")
        a("s_lshl_b32 s79, s78, 2")
        a(f"s_add_u32 s79, s79, {S_W}")
        a("s_lshl_b32 s78, s79, 9")
        a(f"s_add_u32 s78, s78, {WS_O}")
        a("s_lshl_b32 s79, s79, 4")
        a(f"s_add_u32 s79, s79, {WS_ML}")
        a("s_mul_i32 s12, s72, 12288")
        a("s_lshl_b32 s13, s73, 6")
        a("s_add_u32 s12, s12, s13")
        a(f"s_add_u32 s12, s12, {WS_MOD + 512 * 8}")
        a(f"s_add_u32 s13, s12, {768 * 8}")
        a("v_lshlrev_b32 v127, 4, v1")
        a("v_add_u32 v127, 20480, v127")
        a(f"s_mov_b32 s68, {SCALE:#x}")
        a(f"s_mov_b32 s69, {SCALE:#x}")
        a(f"s_mov_b32 s14, {LOG2E:#x}")
        a(f"s_mov_b32 s15, {LOG2E:#x}")
        self.dry_start("L_A_go")
        l = self.skip_begin()
        a("s_waitcnt vmcnt(17)")
        self.take_epoch()
        a("s_waitcnt vmcnt(9)")
        self.skip_end(l)
        for t in range(2):
            for i in range(4):
                a(f"ds_read_b128 {vr(KK + 16 * t + 4 * i, 4)}, v{116 + i} offset:{4096 * t}")
        a("v_mov_b32 v205, v4")
        a("v_mov_b32 v207, v4")
        a("v_mov_b32 v209, v4")
        for p in range(4):
            self.real(f"s_waitcnt vmcnt({7 - 2 * p})")
            for j in range(8):
                sel = S_HI if j & 1 else S_LO
                a(f"v_perm_b32 v{VT + 4 * j + p}, v{VR + 4 * (2 * p + 1) + (j >> 1)}, v{VR + 4 * (2 * p) + (j >> 1)}, {sel}")
        self.stamp(2)
        if self.o.get("pbar", 1):
            self.real("s_barrier")
        lq = a.newlabel("Lqw")
        self.real(f"s_cmp_lg_u32 {S_W}, 0", f"s_cbranch_scc1 {lq}")
        self.poll([f"buffer_load_dwordx4 {vr(QR, 4)}, v7, {WS}, s76 offen sc1",
                   f"buffer_load_dwordx4 {vr(QR + 4, 4)}, v7, {WS}, s76 offen offset:16 sc1"],
                  [QR + 1, QR + 3, QR + 5, QR + 7], 11, sleep=self.o.get("psleep", 0), alt=("s76",))
        a(f"ds_write2_b32 v127, v{QR}, v{QR + 2} offset0:0 offset1:1")
        a(f"ds_write2_b32 v127, v{QR + 4}, v{QR + 6} offset0:2 offset1:3")
        a("s_waitcnt lgkmcnt(0)")
        a.label(lq)
        self.real("s_barrier")
        self.stamp(3)
        for i in range(4):
            a(f"ds_read_b128 {vr(BQ + 4 * i, 4)}, v127 offset:{16 * i}")
        for i in range(4):
            a(f"s_waitcnt lgkmcnt({3 - i})")
            for t in range(2):
                c = "0" if i == 0 else vr(SS + 4 * t, 4)
                a(f"v_mfma_f32_16x16x32_bf16 {vr(SS + 4 * t, 4)}, {vr(KK + 16 * t + 4 * i, 4)}, {vr(BQ + 4 * i, 4)}, {c}")
        S = list(range(SS, SS + 8))
        T4 = [128, 129, 130, 131]
        self.round_pairs(S, T4)
        for k in range(4):
            a(f"v_pk_mul_f32 {vr(SS + 2 * k, 2)}, {vr(SS + 2 * k, 2)}, s[68:69]")
        self.round_pairs(S, T4)
        a(f"v_max3_f32 v12, v{SS}, v{SS + 1}, v{SS + 2}")
        a(f"v_max3_f32 v13, v{SS + 3}, v{SS + 4}, v{SS + 5}")
        a(f"v_max3_f32 v12, v12, v{SS + 6}, v{SS + 7}")
        a("v_max_f32 v12, v12, v13")
        self.xrow_reduce("v_max_f32", [12], [13])
        a("v_mul_f32 v12, s14, v12")
        for k in range(4):
            a(f"v_pk_fma_f32 {vr(SS + 2 * k, 2)}, {vr(SS + 2 * k, 2)}, s[14:15], v[12:13] op_sel_hi:[1,1,0] neg_lo:[0,0,1] neg_hi:[0,0,1]")
        for x in S:
            a(f"v_exp_f32 v{x}, v{x}")
        for p in range(4):
            a(f"v_cvt_pk_bf16_f32 v{PP + p}, v{SS + 2 * p}, v{SS + 1 + 2 * p}")
        fill = [f"v_pk_add_f32 {vr(SS, 2)}, {vr(SS, 2)}, {vr(SS + 2, 2)}",
                f"v_pk_add_f32 {vr(SS + 4, 2)}, {vr(SS + 4, 2)}, {vr(SS + 6, 2)}",
                f"v_pk_add_f32 {vr(SS, 2)}, {vr(SS, 2)}, {vr(SS + 4, 2)}",
                f"v_add_f32 v13, v{SS}, v{SS + 1}",
                "v_mov_b32 v14, v13", "s_nop 0",
                "v_permlane16_swap_b32 v13, v14", "v_add_f32 v13, v13, v14",
                "v_mov_b32 v14, v13", "s_nop 0",
                "v_permlane32_swap_b32 v13, v14", "v_add_f32 v13, v13, v14"]
        for j in range(8):
            a(f"v_mfma_f32_16x16x32_bf16 {vr(OD + 4 * j, 4)}, {vr(VT + 4 * j, 4)}, {vr(PP, 4)}, 0")
            for f in fill[2 * j:2 * j + 2]:
                a(f)
        a("s_mov_b64 s[60:61], exec")
        a("s_and_b64 exec, exec, 0x1111")
        a("ds_write_b64 v10, v[12:13] offset:16896")
        a("s_and_b32 exec_lo, s60, 0x11111111")
        a("s_and_b32 exec_hi, s61, 0x11111111")
        for j in range(8):
            a(f"ds_write_b128 v9, {vr(OD + 4 * j, 4)} offset:{16 * j}")
        a("s_mov_b64 exec, s[60:61]")
        a("s_waitcnt lgkmcnt(0)")
        self.real("s_barrier", f"s_cmp_ge_u32 {S_W}, 4", "s_cbranch_scc1 L_exit")
        self.stamp(4)
        a("ds_read_b64 v[144:145], v121 offset:16896")
        for w in range(8):
            a(f"ds_read_b64 {vr(128 + 2 * w, 2)}, v120 offset:{2112 * w}")
        a("s_waitcnt lgkmcnt(8)")
        a(f"v_max_f32_dpp v204, v144, v144 quad_perm:[1,0,3,2] {DPPF}")
        a(f"v_max_f32_dpp v204, v204, v204 quad_perm:[2,3,0,1] {DPPF}")
        a(f"v_max_f32_dpp v204, v204, v204 row_half_mirror {DPPF}")
        a("v_sub_f32 v146, v144, v204")
        a("v_exp_f32 v146, v146")
        a("v_mul_f32 v206, v146, v145")
        for w in range(8):
            a(f"v_readlane_b32 s{60 + w}, v146, {w}")
        a("s_waitcnt lgkmcnt(0)")
        a("v_mul_f32 v200, s60, v128")
        a("v_mul_f32 v201, s60, v129")
        for w in range(1, 8):
            a(f"v_fmac_f32 v200, s{60 + w}, v{128 + 2 * w}")
            a(f"v_fmac_f32 v201, s{60 + w}, v{129 + 2 * w}")
        a(f"v_and_or_b32 v200, v200, {S_M8}, v5")
        a(f"v_and_or_b32 v201, v201, {S_M8}, v5")
        self.real(*self.dual_store(f"buffer_store_dwordx2 v[200:201], v122, {WS}, {{SO}} offen{{FL}}", "s78"))
        a(f"v_add_f32_dpp v206, v206, v206 quad_perm:[1,0,3,2] {DPPF}")
        a(f"v_add_f32_dpp v206, v206, v206 quad_perm:[2,3,0,1] {DPPF}")
        a(f"v_add_f32_dpp v206, v206, v206 row_half_mirror {DPPF}")
        self.real("s_mov_b64 exec, 1",
                  *self.dual_store(f"buffer_store_dwordx4 v[204:207], off, {WS}, {{SO}}{{FL}}", "s79"),
                  "s_mov_b64 exec, -1",
                  f"s_cmp_lg_u32 {S_W}, 0", "s_cbranch_scc1 L_exit")
        self.stamp(5)
        self.poll([f"buffer_load_dwordx2 v[128:129], v125, {WS}, s12 offen sc1",
                   f"buffer_load_dwordx2 v[130:131], v125, {WS}, s13 offen sc1"], [129, 131], 11, depth=1)
        a("v_lshlrev_b32 v118, 16, v126")
        a("v_lshrrev_b32 v119, v124, v128")
        a("v_lshlrev_b32 v119, 16, v119")
        a("v_lshrrev_b32 v120, v124, v130")
        a("v_lshlrev_b32 v120, 16, v120")
        RB = 168

        def reduce_stage(base, gate, last_half):
            PB = 240 if last_half else 224
            for i in range(4):
                a(f"s_mov_b32 s{60 + i}, {base + 16 * i * PSTR}")
            loads = [f"buffer_load_dwordx4 {vr(PB + 4 * i, 4)}, v123, {WS}, s{60 + i} offen sc1" for i in range(4)]
            if last_half:
                for k in range(4):
                    a(f"v_mov_b32 v{PB + 12 + k}, v5")
                loads = loads[:-1] + ["s_mov_b32 exec_hi, 0", loads[-1], "s_mov_b32 exec_hi, -1"]
            self.poll(loads, [], 11, tags8=list(range(PB, PB + 16)), sleep=self.o.get("psleep", 0))
            for k in (0, 2):
                a(f"v_pk_add_f32 {vr(RB + k, 2)}, {vr(PB + k, 2)}, {vr(PB + 4 + k, 2)}")
                a(f"v_pk_add_f32 {vr(RB + 4 + k, 2)}, {vr(PB + 8 + k, 2)}, {vr(PB + 12 + k, 2)}")
            for k in (0, 2):
                a(f"v_pk_add_f32 {vr(RB + k, 2)}, {vr(RB + k, 2)}, {vr(RB + 4 + k, 2)}")
            a(f"v_permlane32_swap_b32 v{RB}, v{RB + 1}")
            a(f"v_permlane32_swap_b32 v{RB + 2}, v{RB + 3}")
            a(f"v_add_f32 v{RB}, v{RB}, v{RB + 1}")
            a(f"v_add_f32 v{RB + 2}, v{RB + 2}, v{RB + 3}")
            a(f"v_permlane16_swap_b32 v{RB}, v{RB + 2}")
            a(f"v_add_f32 v{RB}, v{RB}, v{RB + 2}")
            a(f"v_add_f32_dpp v{RB}, v{RB}, v{RB} row_ror:4 {DPPF}")
            a(f"v_add_f32_dpp v{RB}, v{RB}, v{RB} row_ror:8 {DPPF}")
            self.round1(RB)
            a(f"v_mul_f32 v{RB}, v{RB}, v{gate}")
            self.round1(RB)
            a(f"v_add_f32 v118, v{RB}, v118")
            a(f"v_mov_b32 v{RB}, v118")
            a(f"v_mov_b32 v{RB + 1}, v118")
            a(f"v_permlane32_swap_b32 v{RB}, v{RB + 1}")
            a(f"v_cvt_pk_bf16_f32 v208, v{RB}, v{RB + 1}")

        self.stamp(6)
        reduce_stage(WS_P3, 119, False)
        self.real("s_mov_b64 exec, 0x000f000f",
                  f"buffer_store_dwordx2 v[208:209], v113, {WS}, s75 offen sc1",
                  "s_mov_b64 exec, -1")
        self.stamp(7)
        self.round1(118)
        reduce_stage(WS_P6, 120, True)
        self.real("s_mov_b64 exec, 0x000f000f",
                  "buffer_store_dword v208, v114, s[56:59], s74 offen",
                  "s_cmp_lg_u32 s71, 0", "s_cbranch_scc1 L_exit",
                  "s_mov_b64 exec, 1",
                  f"buffer_store_dword v4, off, {WS}, 0 sc1")
        self.dry_end("L_A_go")

    def role_b(self):
        a = self.a
        RAW, T, D, PR = 16, 48, 128, 216
        WL = 32768
        a.label("L_roleB")
        a(f"s_lshl_b32 s12, {S_G}, 3")
        a(f"s_add_u32 s12, s12, {S_R}")
        a("s_sub_u32 s12, s12, 24")
        a("s_lshl_b32 s13, s12, 7")
        a("v_lshlrev_b32 v9, 10, v3")
        a(f"s_lshl_b32 s14, {S_W}, 7")
        a("v_lshl_add_u32 v8, v2, 3, v9")
        a("v_lshrrev_b32 v6, 3, v1")
        a("v_and_b32 v7, 7, v1")
        a("v_lshlrev_b32 v7, 4, v7")
        a("v_lshl_add_u32 v118, v6, 10, v7")
        a("v_lshl_add_u32 v7, v6, 13, v7")
        a(f"s_lshl_b32 s15, {S_W}, 19")
        a(f"s_lshl_b32 s75, {S_W}, 13")
        self.wait_args()
        self.srd(56, 16, 4096)
        a("buffer_load_dwordx2 v[96:97], v8, s[56:59], s14 offen")
        self.srd(48, 22, 512 * 8192 - 128 * 63, "s13")
        self.dma(8, 7, "s[48:51]", "s15", 8 * 8192, ("s75", WL))
        self.stamp(1)
        a(f"s_lshl_b32 s68, {S_W}, 8")
        a(f"s_add_u32 s68, s68, {WS_MOD}")
        a("s_add_u32 s69, s68, 2048")
        a("v_mul_u32_u24 v8, 12288, v3")
        a("v_lshl_add_u32 v8, v2, 4, v8")
        a(f"s_lshl_b32 s70, {S_W}, 9")
        self.opbuf_write_addr(9, 10, "s70")
        self.beta64(12, 10)
        a("v_add_u32 v13, s70, v12")
        a(f"s_lshl_b32 s71, {S_W}, 10")
        a("s_add_u32 s71, s71, 4096")
        a("v_lshlrev_b32 v14, 8, v3")
        a("v_lshl_add_u32 v14, v2, 4, v14")
        a("v_add_u32 v14, s71, v14")
        a("v_lshlrev_b32 v112, 3, v0")
        a("v_lshrrev_b32 v113, 5, v0")
        a("v_lshlrev_b32 v113, 14, v113")
        a("v_and_b32 v10, 31, v0")
        a("v_lshl_add_u32 v113, v10, 3, v113")
        a("s_lshl_b32 s76, s12, 8")
        a(f"s_add_u32 s76, s76, {WS_Q}")
        a("s_lshl_b32 s13, s12, 16")
        self.srd(52, 24, 65536, "s13")
        a(f"s_lshl_b32 s74, {S_W}, 7")
        a("v_lshlrev_b32 v119, 3, v2")
        a("v_add_u32 v119, s75, v119")
        a("v_lshl_add_u32 v120, v3, 8, v119")
        a("v_lshl_add_u32 v119, v3, 10, v119")
        a("v_lshrrev_b32 v15, 7, v0")
        a("v_lshl_add_u32 v6, v15, 5, v3")
        a("v_bfe_u32 v10, v0, 6, 1")
        a("v_lshl_add_u32 v10, v10, 4, v2")
        a("v_lshlrev_b32 v114, 11, v6")
        a("v_lshl_add_u32 v114, v10, 3, v114")
        a("v_lshlrev_b32 v115, 6, v6")
        a(f"s_lshl_b32 s13, {S_G}, 13")
        a("s_and_b32 s14, s12, 7")
        a("s_lshl_b32 s14, s14, 8")
        a("s_add_u32 s13, s13, s14")
        a(f"s_add_u32 s77, s13, {WS_O}")
        a(f"s_lshl_b32 s13, {S_G}, 8")
        a("s_lshr_b32 s14, s12, 1")
        a("s_and_b32 s14, s14, 3")
        a("s_lshl_b32 s14, s14, 4")
        a("s_add_u32 s13, s13, s14")
        a(f"s_add_u32 s78, s13, {WS_ML}")
        a("v_lshrrev_b32 v116, 4, v10")
        a("v_lshlrev_b32 v116, 8, v116")
        a("v_lshl_add_u32 v116, v15, 6, v116")
        a("v_and_b32 v10, 15, v10")
        a("v_lshl_add_u32 v116, v10, 2, v116")
        a(f"s_mul_i32 s79, s12, {PSTR}")
        a(f"s_lshl_b32 s13, {S_W}, 8")
        a("s_add_u32 s79, s79, s13")
        a(f"s_add_u32 s79, s79, {WS_P3}")
        a("v_lshlrev_b32 v117, 11, v3")
        a("v_lshl_add_u32 v117, v2, 4, v117")
        if self.o.get("touch", 1):
            off = LOFF if self.o.get("lhop", 1) else 0
            a(f"s_add_u32 s64, s78, {off}")
            a(f"s_add_u32 s65, s77, {off}")
            a(f"buffer_load_dwordx4 {vr(PR + 8, 4)}, v115, {WS}, s64 offen sc1")
            a(f"buffer_load_dwordx2 {vr(PR + 12, 2)}, v114, {WS}, s65 offen sc1")
        a(f"s_lshl_b32 s13, {S_W}, 3")
        a("v_lshlrev_b32 v121, 6, v3")
        a("v_add_u32 v122, s13, v121")
        a("s_waitcnt vmcnt(%d)" % (10 if self.o.get("touch", 1) else 8))
        self.take_epoch()
        a("v_mov_b32 v102, 0")
        a("v_mov_b32 v103, 0")
        for x in (96, 97):
            a(f"v_dot2c_f32_bf16 v102, {S_ONES}, v{x}")
            a(f"v_dot2c_f32_bf16 v103, v{x}, v{x}")
        self.row_reduce("v_add_f32", [102, 103])
        a("ds_write_b64 v122, v[102:103] offset:13312")
        a("s_waitcnt lgkmcnt(0)")
        a("s_barrier")
        for k in range(4):
            a(f"ds_read_b128 {vr(80 + 4 * k, 4)}, v121 offset:{13312 + 16 * k}")
        a("s_waitcnt lgkmcnt(0)")
        for k in range(1, 8):
            a(f"v_pk_add_f32 v[80:81], v[80:81], {vr(80 + 2 * k, 2)}")
        a("v_mov_b32 v102, v80")
        a("v_mov_b32 v103, v81")
        self.ln_params(102, 103, 10)
        a("v_lshlrev_b32 v104, 16, v10")
        self.unpack(98, 99, 96)
        self.unpack(100, 101, 97)
        xs = [98, 99, 100, 101]
        for x in xs:
            a(f"v_sub_f32 v{x}, v{x}, v102")
        self.round_pairs(xs, [10, 11])
        for x in xs:
            self.div_refine(x, 104, 103, 105, 106)
        self.round_pairs(xs, [10, 11])
        a("v_mov_b32 v153, v4")
        self.dry_start("L_B_go")
        self.real("s_waitcnt vmcnt(0)")
        self.readback(2, RAW, 119, WL)
        a("s_waitcnt lgkmcnt(0)")
        self.g_perm(2, RAW, T)
        self.stamp(2)
        if self.o.get("pbar", 1):
            self.real("s_barrier")
        self.poll([f"buffer_load_dwordx4 {vr(PR + 4, 4)}, v8, {WS}, s69 offen sc1",
                   f"buffer_load_dwordx4 {vr(PR, 4)}, v8, {WS}, s68 offen sc1"], [PR + 1, PR + 3, PR + 5, PR + 7], 11, sleep=self.o.get("psleep", 0))
        self.stamp(3)
        self.unpack(104, 105, PR + 4)
        self.unpack(106, 107, PR + 6)
        a("v_pk_add_f32 v[104:105], v[104:105], 1.0 op_sel_hi:[1,0]")
        a("v_pk_add_f32 v[106:107], v[106:107], 1.0 op_sel_hi:[1,0]")
        self.round_pairs([104, 105, 106, 107], [10, 11])
        a("v_pk_mul_f32 v[104:105], v[104:105], v[98:99]")
        a("v_pk_mul_f32 v[106:107], v[106:107], v[100:101]")
        self.round_pairs([104, 105, 106, 107], [10, 11])
        self.unpack(108, 109, PR)
        self.unpack(110, 111, PR + 2)
        a("v_pk_add_f32 v[104:105], v[104:105], v[108:109]")
        a("v_pk_add_f32 v[106:107], v[106:107], v[110:111]")
        a("v_cvt_pk_bf16_f32 v80, v104, v105")
        a("v_cvt_pk_bf16_f32 v81, v106, v107")
        a("ds_write_b64 v9, v[80:81]")
        a("ds_read_b128 v[88:91], v13")
        a("ds_read_b128 v[92:95], v13 offset:256")
        a("s_waitcnt lgkmcnt(0)")
        self.g_mfma(2, T, 88, D)
        a(f"ds_write2_b32 v14, v{D}, v{D + 4} offset0:0 offset1:1")
        a(f"ds_write2_b32 v14, v{D + 8}, v{D + 12} offset0:2 offset1:3")
        a("s_waitcnt lgkmcnt(0)")
        self.real("s_barrier", f"s_cmp_ge_u32 {S_W}, 2", "s_cbranch_scc1 L_B_wo")
        self.sum8_pack(80, 112, 4096, 1024, 152)
        self.real(*self.dual_store(f"buffer_store_dwordx2 v[152:153], v113, {WS}, {{SO}} offen{{FL}}", "s76"))
        self.stamp(4)
        a.label("L_B_wo")
        l = self.skip_begin()
        a("s_barrier")
        self.dma(8, 118, "s[52:55]", "s74", 8 * 1024, ("s75", WL))
        a("s_waitcnt vmcnt(0)")
        self.skip_end(l)
        self.readback(2, RAW, 120, WL, rowmap=lambda s, i: 32 * s + 8 * (i & 3) + (i >> 2))
        a("s_waitcnt lgkmcnt(0)")
        self.g_perm(2, RAW, T)
        self.stamp(5)
        if self.o.get("pbar", 1):
            self.real("s_barrier")
        P2 = PR + 8
        self.poll([f"buffer_load_dwordx4 {vr(P2, 4)}, v115, {WS}, s78 offen sc1",
                   f"buffer_load_dwordx2 {vr(P2 + 4, 2)}, v114, {WS}, s77 offen sc1"], [P2 + 1, P2 + 3], 11, tags8=[P2 + 4, P2 + 5], sleep=self.o.get("psleep", 0), alt=("s78", "s77"))
        self.stamp(6)
        a(f"v_mov_b32 v88, v{P2}")
        self.xrow_reduce("v_max_f32", [88], [89])
        a(f"v_sub_f32 v88, v{P2}, v88")
        a("v_exp_f32 v88, v88")
        a(f"v_mul_f32 v86, v{P2 + 2}, v88")
        a(f"v_mul_f32 v80, v{P2 + 4}, v88")
        a(f"v_mul_f32 v81, v{P2 + 5}, v88")
        a("v_mov_b32 v87, v86")
        a("v_permlane32_swap_b32 v80, v81")
        a("v_permlane32_swap_b32 v86, v87")
        a("v_add_f32 v80, v80, v81")
        a("v_add_f32 v86, v86, v87")
        a("v_permlane16_swap_b32 v80, v86")
        a("v_add_f32 v80, v80, v86")
        a("v_rcp_f32 v81, v80")
        a("v_mov_b32 v82, v80")
        a("v_mov_b32 v83, v81")
        a("v_permlane32_swap_b32 v80, v82")
        a("v_permlane16_swap_b32 v81, v83")
        a("v_mul_f32 v80, v80, v83")
        a("v_mul_f32 v82, v82, v83")
        a("v_cvt_pk_bf16_f32 v80, v80, v82")
        a("s_mov_b64 s[60:61], exec")
        a("s_and_b64 exec, exec, 0xffff")
        a("ds_write_b32 v116, v80 offset:12288")
        a("s_mov_b64 exec, s[60:61]")
        a("s_waitcnt lgkmcnt(0)")
        self.real("s_barrier")
        a("ds_read_b128 v[88:91], v12 offset:12288")
        a("ds_read_b128 v[92:95], v12 offset:12544")
        a("s_waitcnt lgkmcnt(0)")
        self.g_mfma(2, T, 88, D)
        self.publish_dense4(D, 144, 117, "s79")
        self.stamp(7)
        self.dry_end("L_B_go")

    def role_c(self):
        a = self.a
        H2, RED2, HH = 12288, 16896, 25088
        WL = 32768
        R1, R3, R2, T1, T3, T2, PR = 64, 80, 96, 160, 176, 192, 216
        a.label("L_roleC")
        a(f"s_lshl_b32 s12, {S_G}, 3")
        a(f"s_add_u32 s12, s12, {S_R}")
        a(f"s_lshl_b32 s13, {S_W}, 7")
        a("v_lshlrev_b32 v10, 10, v3")
        a("v_lshl_add_u32 v10, v2, 3, v10")
        a(f"s_mul_i32 s15, {S_W}, {64 * 6144}")
        a("v_lshrrev_b32 v122, 2, v1")
        a("v_and_b32 v123, 3, v1")
        a("v_lshlrev_b32 v123, 4, v123")
        a("v_lshrrev_b32 v124, 3, v1")
        a("v_and_b32 v125, 7, v1")
        a("v_lshlrev_b32 v125, 4, v125")
        a("s_movk_i32 s14, 6144")
        a("v_mad_u32_u24 v6, v122, s14, v123")
        a("v_mad_u32_u24 v7, v124, s14, v125")
        a(f"s_lshl_b32 s78, {S_W}, 12")
        a(f"s_lshl_b32 s79, {S_W}, 13")
        self.wait_args()
        self.srd(48, 34, 4096)
        a("buffer_load_dwordx2 v[8:9], v10, s[48:51], s13 offen")
        self.srd(52, 36, 512 * 6144)
        a("s_cmp_ge_u32 s12, 32")
        a("s_cbranch_scc1 L_C_zl")
        a("s_lshl_b32 s14, s12, 6")
        a("s_add_u32 s14, s14, s15")
        self.dma(4, 6, "s[52:55]", "s14", 16 * 6144, ("s78", WL))
        a("s_waitcnt vmcnt(4)")
        a("s_branch L_C_silu")
        a.label("L_C_zl")
        a("s_lshl_b32 s14, s12, 7")
        a("s_add_u32 s14, s14, s15")
        a(f"s_sub_u32 s14, s14, {32 * 128 - 2048}")
        self.dma(8, 7, "s[52:55]", "s14", 8 * 6144, ("s79", WL))
        a("s_waitcnt vmcnt(8)")
        a.label("L_C_silu")
        self.stamp(1)
        self.take_epoch()
        xs, es, rs = [56, 57, 58, 59], [60, 61, 62, 63], [116, 117, 118, 119]
        self.unpack(56, 57, 8)
        self.unpack(58, 59, 9)
        for x, t in zip(xs, es):
            a(f"v_mul_f32 v{t}, {NLOG2E:#x}, v{x}")
        for t in es:
            a(f"v_exp_f32 v{t}, v{t}")
        a(f"s_lshl_b32 s70, {S_W}, 9")
        self.opbuf_write_addr(10, 11, "s70")
        self.beta64(12, 11)
        a("v_add_u32 v11, s70, v12")
        for t in es:
            a(f"v_add_f32 v{t}, 1.0, v{t}")
            a(f"v_min_f32 v{t}, 0x7f7fffff, v{t}")
        for t, r in zip(es, rs):
            a(f"v_rcp_f32 v{r}, v{t}")
        for x, t, r in zip(xs, es, rs):
            self.div_refine(x, t, r, 120, 121)
        a("v_cvt_pk_bf16_f32 v8, v56, v57")
        a("v_cvt_pk_bf16_f32 v9, v58, v59")
        a("ds_write_b64 v10, v[8:9]")
        a("ds_read_b128 v[48:51], v11")
        a("ds_read_b128 v[52:55], v11 offset:256")
        a("v_mov_b32 v145, v4")
        a("v_lshlrev_b32 v13, 3, v1")
        a("v_add_u32 v14, s70, v13")
        a("v_lshlrev_b32 v126, 9, v3")
        a("v_lshl_add_u32 v126, v2, 2, v126")
        a("v_add_u32 v126, s78, v126")
        a("v_lshlrev_b32 v127, 10, v3")
        a("v_lshl_add_u32 v127, v2, 3, v127")
        a("s_cmp_ge_u32 s12, 32")
        a("s_cbranch_scc1 L_C_z")
        a("v_mul_u32_u24 v15, 12288, v3")
        a("v_lshl_add_u32 v15, v2, 3, v15")
        a("s_lshl_b32 s71, s12, 7")
        a(f"s_add_u32 s71, s71, {WS_MOD}")
        a("s_waitcnt vmcnt(0)")
        self.stamp(2)
        self.readback(1, 16, 126, WL)
        a("s_waitcnt lgkmcnt(0)")
        self.g_perm(1, 16, 32)
        self.g_mfma(1, 32, 48, 128)
        a("ds_write2_b32 v14, v128, v132 offset0:0 offset1:1")
        a("s_waitcnt lgkmcnt(0)")
        a("s_barrier")
        a(f"s_cmp_lg_u32 {S_W}, 0")
        a("s_cbranch_scc1 L_C_mlp")
        self.sum8_pack(128, 13, 0, 512, 144)
        a(f"buffer_store_dwordx2 v[144:145], v15, {WS}, s71 offen sc1")
        self.stamp(3)
        a("s_branch L_C_mlp")
        a.label("L_C_z")
        a(f"s_lshl_b32 s72, {S_W}, 10")
        a("s_add_u32 s72, s72, 4096")
        a("v_lshlrev_b32 v112, 8, v3")
        a("v_lshl_add_u32 v112, v2, 4, v112")
        a("v_add_u32 v112, s72, v112")
        a("v_lshlrev_b32 v113, 3, v0")
        a("v_lshrrev_b32 v114, 5, v0")
        a("v_mul_u32_u24 v114, 12288, v114")
        a("v_and_b32 v115, 31, v0")
        a("v_lshl_add_u32 v114, v115, 3, v114")
        a("s_lshl_b32 s72, s12, 8")
        a(f"s_add_u32 s72, s72, {WS_MOD + 512 * 8 - 32 * 256}")
        a("v_add_u32 v115, s79, v127")
        a("s_waitcnt vmcnt(0)")
        self.stamp(2)
        self.readback(2, 16, 115, WL)
        a("s_waitcnt lgkmcnt(0)")
        self.g_perm(2, 16, 160)
        self.g_mfma(2, 160, 48, 128)
        a("ds_write2_b32 v112, v128, v132 offset0:0 offset1:1")
        a("ds_write2_b32 v112, v136, v140 offset0:2 offset1:3")
        a("s_waitcnt lgkmcnt(0)")
        a("s_barrier")
        a(f"s_cmp_ge_u32 {S_W}, 2")
        a("s_cbranch_scc1 L_C_zd")
        self.sum8_pack(128, 113, 4096, 1024, 144)
        a(f"buffer_store_dwordx2 v[144:145], v114, {WS}, s72 offen sc1")
        self.stamp(3)
        a.label("L_C_zd")
        a(f"s_cmp_ge_u32 s12, {NP6}")
        a("s_cbranch_scc1 L_exit")
        a.label("L_C_mlp")
        self.srd(56, 28, 512 * 3584)
        self.srd(60, 30, 512 * 3584)
        self.srd(64, 32, 1792 * 1024)
        a(f"s_mul_i32 s13, {S_W}, {64 * 3584}")
        a("s_movk_i32 s14, 3584")
        a("v_mad_u32_u24 v6, v122, s14, v123")
        a("s_lshl_b32 s74, s12, 6")
        a("s_add_u32 s74, s74, s13")
        a("s_mov_b32 s75, s74")
        a(f"s_lshl_b32 s13, {S_W}, 7")
        a("v_lshl_add_u32 v7, v124, 10, v125")
        a("s_lshl_b32 s76, s12, 15")
        a("s_add_u32 s76, s76, s13")
        a("s_barrier")
        self.dma(4, 6, "s[56:59]", "s74", 16 * 3584, ("s78", WL))
        self.dma(4, 6, "s[60:63]", "s75", 16 * 3584, ("s78", WL + 32768))
        self.dma(4, 7, "s[64:67]", "s76", 8 * 1024, ("s78", WL + 65536))
        self.stamp(4)
        a("v_add_u32 v127, s78, v127")
        a(f"s_and_b32 s13, {S_W}, 3")
        a(f"s_lshr_b32 s14, {S_W}, 2")
        a("s_mul_i32 s15, s13, 12288")
        a("s_lshl_b32 s68, s14, 4")
        a("s_add_u32 s15, s15, s68")
        a(f"s_add_u32 s72, s15, {WS_MOD + 1024 * 8}")
        a(f"s_add_u32 s73, s15, {WS_MOD + 768 * 8}")
        a("v_lshlrev_b32 v15, 5, v1")
        a("s_lshl_b32 s68, s13, 11")
        a(f"s_add_u32 s68, s68, {WS_X1}")
        a("s_lshl_b32 s69, s14, 4")
        a("s_sub_u32 s71, 16, s69")
        a("s_add_u32 s69, s69, s68")
        a("s_add_u32 s71, s71, s68")
        a("s_mul_i32 s77, s13, 1088")
        a("s_lshl_b32 s70, s14, 3")
        a("s_add_u32 s77, s77, s70")
        a("v_lshlrev_b32 v6, 4, v1")
        a("v_add_u32 v6, s77, v6")
        a("v_lshrrev_b32 v7, 6, v12")
        a("v_mul_u32_u24 v7, 1088, v7")
        a("v_lshl_add_u32 v7, v3, 4, v7")
        a(f"s_lshl_b32 s70, {S_W}, 7")
        a("v_add_u32 v7, s70, v7")
        a(f"v_add_u32 v8, {RED2}, v14")
        a(f"v_add_u32 v9, {RED2 + 4096}, v14")
        a("v_lshrrev_b32 v112, 5, v1")
        a("v_lshlrev_b32 v112, 12, v112")
        a("v_and_b32 v13, 31, v1")
        a("v_lshl_add_u32 v112, v13, 2, v112")
        a("s_lshl_b32 s70, s13, 7")
        a("v_add_u32 v112, s70, v112")
        a("s_lshl_b32 s70, s13, 6")
        a("v_lshlrev_b32 v13, 1, v13")
        a("v_add_u32 v13, s70, v13")
        a(f"s_mul_i32 s70, s12, {PSTR}")
        a(f"s_lshl_b32 s77, {S_W}, 8")
        a("s_add_u32 s70, s70, s77")
        a(f"s_add_u32 s70, s70, {WS_P6}")
        a("v_lshlrev_b32 v14, 11, v3")
        a("v_lshl_add_u32 v14, v2, 4, v14")
        a("v_add_u32 v113, 0x8000, v126")
        a("v_add_u32 v127, 0x10000, v127")
        self.dry_start("L_C_go")
        self.real("s_waitcnt vmcnt(8)")
        self.readback(1, R1, 126, WL)
        self.real("s_waitcnt vmcnt(4)")
        self.readback(1, R3, 113, WL)
        a("s_waitcnt lgkmcnt(15)")
        a("s_waitcnt lgkmcnt(0)")
        self.g_perm(1, R1, T1)
        self.g_perm(1, R3, T3)
        self.real("s_waitcnt vmcnt(0)")
        self.readback(2, R2, 127, WL, nsteps=1)
        a("s_waitcnt lgkmcnt(0)")
        self.g_perm(2, R2, T2, nsteps=1)
        self.stamp(5)
        if self.o.get("pbar", 1):
            self.real("s_barrier")
        self.poll([f"buffer_load_dwordx4 v[16:19], v15, {WS}, s72 offen sc1",
                   f"buffer_load_dwordx4 v[20:23], v15, {WS}, s73 offen sc1"], [17, 19, 21, 23], 11, sleep=1, depth=1)
        self.unpack(40, 41, 16)
        self.unpack(42, 43, 18)
        for x in (40, 41, 42, 43):
            a(f"v_add_f32 v{x}, 1.0, v{x}")
        self.round_pairs([40, 41, 42, 43], [10, 11])
        self.unpack(44, 45, 20)
        self.unpack(46, 47, 22)
        a("v_mov_b32 v32, 0")
        a("v_mov_b32 v33, 0")
        self.poll([f"buffer_load_dwordx4 {vr(PR, 4)}, v15, {WS}, s69 offen sc1",
                   f"buffer_load_dwordx4 {vr(PR + 4, 4)}, v15, {WS}, s71 offen sc1"], [PR + 1, PR + 3, PR + 5, PR + 7], 11, sleep=self.o.get("psleep", 0))
        self.stamp(6)
        for x in (PR, PR + 2, PR + 4, PR + 6):
            a(f"v_dot2c_f32_bf16 v32, {S_ONES}, v{x}")
            a(f"v_dot2c_f32_bf16 v33, v{x}, v{x}")
        self.unpack(34, 35, PR)
        self.unpack(36, 37, PR + 2)
        self.row_reduce("v_add_f32", [32, 33])
        a("v_permlane32_swap_b32 v32, v33")
        a("v_add_f32 v32, v32, v33")
        a("v_mov_b32 v33, v32")
        a("v_permlane16_swap_b32 v32, v33")
        a("v_add_f32 v32, v32, v33")
        a("v_mov_b32 v33, v32")
        a("v_permlane32_swap_b32 v32, v33")
        self.ln_params(32, 33, 10)
        for k in (34, 36):
            a(f"v_pk_add_f32 {vr(k, 2)}, {vr(k, 2)}, v[32:33] op_sel_hi:[1,0] neg_lo:[0,1] neg_hi:[0,1]")
        for k in (34, 36):
            a(f"v_pk_mul_f32 {vr(k, 2)}, {vr(k, 2)}, v[32:33] op_sel:[0,1] op_sel_hi:[1,1]")
        for k in (34, 36):
            a(f"v_pk_fma_f32 {vr(k, 2)}, {vr(k, 2)}, {vr(k + 6, 2)}, {vr(k + 10, 2)}")
        a("v_cvt_pk_bf16_f32 v16, v34, v35")
        a("v_cvt_pk_bf16_f32 v17, v36, v37")
        a(f"ds_write_b64 v6, v[16:17] offset:{H2}")
        a("s_waitcnt lgkmcnt(0)")
        self.real("s_barrier")
        self.stamp(7)
        a(f"ds_read_b128 v[48:51], v7 offset:{H2}")
        a(f"ds_read_b128 v[52:55], v7 offset:{H2 + 64}")
        a("s_waitcnt lgkmcnt(0)")
        self.g_mfma(1, T1, 48, 16)
        self.g_mfma(1, T3, 48, 24)
        a("ds_write2_b32 v8, v16, v20 offset0:0 offset1:1")
        a("ds_write2_b32 v9, v24, v28 offset0:0 offset1:1")
        a("s_waitcnt lgkmcnt(0)")
        self.real("s_barrier", f"s_cmp_ge_u32 {S_W}, 4", "s_cbranch_scc1 L_C_s5")
        for w in range(8):
            a(f"ds_read_b32 v{16 + w}, v112 offset:{RED2 + 512 * w}")
        a("s_waitcnt lgkmcnt(4)")
        a("v_pk_add_f32 v[16:17], v[16:17], v[18:19]")
        a("s_waitcnt lgkmcnt(0)")
        a("v_pk_add_f32 v[20:21], v[20:21], v[22:23]")
        a("v_pk_add_f32 v[16:17], v[16:17], v[20:21]")
        a("v_add_f32 v16, v16, v17")
        self.round1(16)
        a("v_mov_b32 v17, v16")
        a("v_permlane32_swap_b32 v16, v17")
        a(f"v_mul_f32 v18, {NLOG2E:#x}, v16")
        a("v_exp_f32 v18, v18")
        a("v_add_f32 v18, 1.0, v18")
        a("v_rcp_f32 v18, v18")
        a("v_mul_f32 v16, v16, v18")
        self.round1(16)
        a("v_mul_f32 v16, v16, v17")
        a("v_cvt_pk_bf16_f32 v16, v16, v16")
        a(f"ds_write_b16 v13, v16 offset:{HH}")
        a("s_waitcnt lgkmcnt(0)")
        a.label("L_C_s5")
        self.real("s_barrier")
        a(f"ds_read_b128 v[48:51], v12 offset:{HH}")
        a("s_waitcnt lgkmcnt(0)")
        self.g_mfma(2, T2, 48, 16, nsteps=1)
        self.publish_dense4(16, 56, 14, "s70")
        self.stamp(8)
        self.dry_end("L_C_go")

    def build(self):
        a = self.a
        self.prologue()
        self.role_a()
        self.role_b()
        self.role_c()
        a.label("L_exit")
        self.stamp(NSTAMP - 1)
        self.dump_stamps()
        a.label("L_end")
        a("s_endpgm")
        body = a.finish()
        here = os.path.dirname(os.path.abspath(__file__))
        ref = open(os.path.join(here, "..", "cdna_kernels", NAME + ".s.ref")).read()
        head = [l for l in ref.splitlines() if l.startswith(";") and "@launch" not in l]
        txt = "\n".join(head) + f"\n; @launch grid=(256,1,1) block=(512,1,1) lds={self.lds}\n"
        txt += f""".amdgcn_target "amdgcn-amd-amdhsa--gfx950"
.text
.globl {NAME}_kernel
.p2align 8
.type {NAME}_kernel,@function
{NAME}_kernel:
{body}
.section .rodata,"a"
.p2align 6
.amdhsa_kernel {NAME}_kernel
  .amdhsa_next_free_vgpr 256
  .amdhsa_next_free_sgpr 102
  .amdhsa_accum_offset 256
  .amdhsa_group_segment_fixed_size 0
  .amdhsa_kernarg_size 112
  .amdhsa_user_sgpr_count 2
  .amdhsa_user_sgpr_kernarg_segment_ptr 1
  .amdhsa_system_sgpr_workgroup_id_x 1
  .amdhsa_float_denorm_mode_32 3
.end_amdhsa_kernel
"""
        return txt


if __name__ == "__main__":
    import argparse
    ap = argparse.ArgumentParser()
    ap.add_argument("-o", default=None)
    ap.add_argument("--diag", action="store_true")
    ap.add_argument("--dry", action="store_true")
    ap.add_argument("--exact-h2", action="store_true")
    ap.add_argument("--athr", type=int, default=0)
    ap.add_argument("--cpf", type=int, default=0)
    ap.add_argument("--asleep", type=int, default=0)
    ap.add_argument("--zlate", type=int, default=0)
    ap.add_argument("--pdepth", type=int, default=1)
    ap.add_argument("--pgap", type=int, default=4)
    ap.add_argument("--pbar", type=int, default=1)
    ap.add_argument("--psleep", type=int, default=0)
    ap.add_argument("--lhop", type=int, default=1)
    ap.add_argument("--touch", type=int, default=1)
    args = ap.parse_args()
    g = Gen(diag=args.diag, opts={"dry": args.dry, "exact_h2": args.exact_h2, "athr": args.athr, "cpf": args.cpf, "asleep": args.asleep, "zlate": args.zlate, "pdepth": args.pdepth, "pgap": args.pgap, "pbar": args.pbar, "psleep": args.psleep, "lhop": args.lhop, "touch": args.touch})
    txt = g.build()
    out = args.o or os.path.join(os.path.dirname(os.path.abspath(__file__)), "..", "cdna_kernels", NAME + ".s")
    open(out, "w").write(txt)
    print("wrote", out, "nops:", g.a.nnop, "lines:", txt.count("\n"))
```
